```python
import torch

def _softmax(x, axis=-1):
    return torch.softmax(x, dim=axis)

def _gelu(x):
    return torch.nn.functional.gelu(x, approximate='tanh')

def _silu(x):
    return torch.nn.functional.silu(x)

def _sigmoid(x):
    return torch.sigmoid(x)

def _layernorm(x, axis=-1, eps=1e-05):
    m = x.mean(dim=axis, keepdim=True)
    v = x.var(dim=axis, keepdim=True, unbiased=False)
    return (x - m) / torch.sqrt(v + eps)

def _scatter_add(tgt, idx, src, axis=0):
    return tgt.clone().index_add_(axis, idx, src)

def _segment_sum(src, seg, n):
    out = torch.zeros((n,) + src.shape[1:], dtype=src.dtype)
    return out.index_add_(0, seg, src)

def _pad(x, pw):
    flat = tuple((v for pair in reversed(pw) for v in pair))
    return torch.nn.functional.pad(x, flat)
kernel_name = 'gated_mix__spectral_fnet__mixer_gmlp__prompt'

def setup_inputs():

    _w = lambda a: (lambda t: t.to(torch.bfloat16) if t.is_floating_point() else t)(torch.as_tensor(a))

    def _A_setup():
        B, S, D = (1, 2048, 512)
        ns = torch.arange(S)[:, None] * torch.arange(S)[None, :]
        nd = torch.arange(D)[:, None] * torch.arange(D)[None, :]
        Ws_re = torch.cos(-2.0 * torch.pi * ns / S).to(float)
        Ws_im = torch.sin(-2.0 * torch.pi * ns / S).to(float)
        Wd_re = torch.cos(-2.0 * torch.pi * nd / D).to(float)
        Wd_im = torch.sin(-2.0 * torch.pi * nd / D).to(float)
        return {'x': _w((lambda *s: torch.randn(*s, dtype=torch.bfloat16) * 0.05)(B, S, D)), 'dft_seq_re': _w(Ws_re), 'dft_seq_im': _w(Ws_im), 'dft_hid_re': _w(Wd_re), 'dft_hid_im': _w(Wd_im)}
    _A_in = _A_setup()

    def _B_setup():
        B, S, D, F = (1, 2048, 512, 1792)
        Fh = F // 2
        return {'x': _w((lambda *s: torch.randn(*s, dtype=torch.bfloat16) * 0.05)(B, S, D)), 'w_in': _w((lambda *s: torch.randn(*s, dtype=torch.bfloat16) * 1.6)(D, 2 * Fh)), 'w_sp': _w(0.01 * (lambda *s: torch.randn(*s, dtype=torch.bfloat16) * 1.6)(S, S)), 'b_sp': _w(1.0 + 0.01 * (lambda *s: torch.randn(*s, dtype=torch.bfloat16) * 0.8)(S)), 'w_out': _w((lambda *s: torch.randn(*s, dtype=torch.bfloat16) * 0.8)(Fh, D))}
    _B_in = _B_setup()
    return {'A_x': _A_in['x'], 'A_dft_seq_re': _A_in['dft_seq_re'], 'A_dft_seq_im': _A_in['dft_seq_im'], 'A_dft_hid_re': _A_in['dft_hid_re'], 'A_dft_hid_im': _A_in['dft_hid_im'], 'B_x': _B_in['x'], 'B_w_in': _B_in['w_in'], 'B_w_sp': _B_in['w_sp'], 'B_b_sp': _B_in['b_sp'], 'B_w_out': _B_in['w_out'], 'gate_w': _w((lambda *s: torch.randn(*s, dtype=torch.bfloat16) * 0.05)(512) * 16.0)}

def reference(A_x, A_dft_seq_re, A_dft_seq_im, A_dft_hid_re, A_dft_hid_im, B_x, B_w_in, B_w_sp, B_b_sp, B_w_out, gate_w):

    def _A_ref(x, dft_seq_re, dft_seq_im, dft_hid_re, dft_hid_im):
        a = torch.einsum('bsd,ed->bse', x, dft_hid_re)
        b = torch.einsum('bsd,ed->bse', x, dft_hid_im)
        y = torch.einsum('ts,bse->bte', dft_seq_re, a) - torch.einsum('ts,bse->bte', dft_seq_im, b)
        return y

    def _B_ref(x, w_in, w_sp, b_sp, w_out):
        B, S, D = x.shape
        F = w_in.shape[-1]
        Fh = F // 2
        z = _gelu(torch.einsum('bsd,df->bsf', x, w_in))
        z1 = z[..., :Fh].clone()
        z2 = _layernorm(z[..., Fh:], axis=-1)
        g = torch.einsum('ts,bsf->btf', w_sp, z2) + b_sp[None, :, None]
        return torch.einsum('bsf,fd->bsd', z1 * g, w_out)
    x = A_x
    g = _sigmoid((x * gate_w).sum(-1, keepdims=True))
    a = _A_ref(x, A_dft_seq_re, A_dft_seq_im, A_dft_hid_re, A_dft_hid_im)
    b = _B_ref(x, B_w_in, B_w_sp, B_b_sp, B_w_out)
    return g * a + (1 - g) * b
```

```python
import re

TRANS = ('v_exp_f32', 'v_log_f32', 'v_rcp_f32', 'v_rsq_f32', 'v_sqrt_f32', 'v_sin_f32', 'v_cos_f32')

def parse_regs(op):
    op = op.strip()
    op = op.lstrip('-')
    if op.startswith('abs(') or op.startswith('|'):
        op = op.strip('|').replace('abs(', '').rstrip(')')
    m = re.fullmatch(r'([vas])(\d+)', op)
    if m: return {(m.group(1), int(m.group(2)))}
    m = re.fullmatch(r'([vas])\[(\d+):(\d+)\]', op)
    if m: return {(m.group(1), i) for i in range(int(m.group(2)), int(m.group(3)) + 1)}
    if op == 'vcc': return {('vcc', 0)}
    if op in ('vcc_lo', 'vcc_hi'): return {('vcc', 0)}
    if op == 'exec': return {('exec', 0)}
    if op == 'm0': return {('m0', 0)}
    return set()

class Ins:
    def __init__(self, text):
        self.text = text
        t = text.split(';')[0].strip()
        parts = t.split(None, 1)
        self.mn = parts[0]
        rest = parts[1] if len(parts) > 1 else ''
        ops, depth, cur = [], 0, ''
        for ch in rest:
            if ch == '[': depth += 1
            if ch == ']': depth -= 1
            if ch == ',' and depth == 0:
                ops.append(cur); cur = ''
            else: cur += ch
        if cur.strip(): ops.append(cur)
        self.mods = ''
        if ops:
            last = ops[-1].strip().split(None, 1)
            ops[-1] = last[0]
            self.mods = last[1] if len(last) > 1 else ''
        self.ops = [o.strip() for o in ops]
        mn = self.mn
        R = [parse_regs(o) for o in self.ops]
        un = lambda l: set().union(*l) if l else set()
        self.kind = 'other'
        self.w = set(); self.r = set()
        self.states = 1
        self.trans = False; self.dpp = False; self.perm = False; self.rdlane = False
        self.wide_store = False; self.ldsdma = False
        if mn == 's_nop':
            self.kind = 'nop'; self.states = int(self.ops[0], 0) + 1
        elif mn.startswith('v_mfma'):
            self.kind = 'mfma'; self.w = R[0]; self.A = R[1]; self.B = R[2]; self.C = R[3]
            self.r = R[1] | R[2] | R[3]
            self.passes = 8 if '32x32' in mn else 4
        elif mn.startswith('v_'):
            self.kind = 'valu'
            self.trans = any(mn.startswith(x) for x in TRANS)
            self.dpp = ('_dpp' in mn) or ('row_' in self.mods) or ('quad_perm' in self.mods)
            if mn.startswith('v_permlane'):
                self.perm = True; self.w = R[0] | R[1]; self.r = R[0] | R[1]
            elif mn.startswith(('v_add_co', 'v_sub_co', 'v_addc_co', 'v_subb_co', 'v_subrev_co')):
                self.w = R[0] | R[1]; self.r = un(R[2:])
            else:
                self.w = R[0]; self.r = un(R[1:])
                if mn.startswith(('v_fmac', 'v_pk_fmac', 'v_dot2c', 'v_writelane')) or self.dpp: self.r |= R[0]
            if mn.startswith(('v_readfirstlane', 'v_readlane')): self.rdlane = True
        elif mn.startswith('ds_'):
            self.kind = 'ds'
            if mn.startswith(('ds_read', 'ds_bpermute', 'ds_permute', 'ds_swizzle')):
                self.w = R[0]; self.r = un(R[1:])
            else:
                self.r = un(R)
        elif mn.startswith(('buffer_', 'global_')):
            self.kind = 'vmem'
            mods = ' ' + self.mods + ' '
            if ' lds ' in mods or '_lds_' in mn:
                self.ldsdma = True; self.r = un(R) | {('m0', 0)}
            elif '_load' in mn:
                self.w = R[0]; self.r = un(R[1:])
            else:
                self.r = un(R)
                if 'x4' in mn or 'x3' in mn:
                    self.wide_store = True
                    self.data = R[0] if mn.startswith('buffer_') else R[1]
        elif mn.startswith('s_'):
            self.kind = 'salu'
            if mn.startswith(('s_cmp', 's_cbranch', 's_branch', 's_waitcnt', 's_barrier', 's_sleep', 's_setprio', 's_endpgm', 's_setpc')):
                self.r = un(R)
            else:
                self.w = R[0] if R else set(); self.r = un(R[1:])
                if 'saveexec' in mn: self.w |= {('exec', 0)}

def vec(s): return {x for x in s if x[0] in 'va' and x[0] != 'vcc'}
def sca(s): return {x for x in s if x[0] in ('s', 'vcc')}

def need(p, c):
    n = 0
    if p.kind == 'valu':
        pw = vec(p.w); ps = sca(p.w)
        if c.kind == 'mfma' and pw & c.r: n = max(n, 2)
        if c.kind == 'valu':
            if p.trans and not c.trans and pw & c.r: n = max(n, 1)
            if p.trans and c.trans and pw & c.r: n = max(n, 1)
            if (c.dpp or c.perm) and pw & c.r: n = max(n, 2)
            if c.rdlane and pw & c.r: n = max(n, 1)
            if ps & c.r: n = max(n, 4 if c.rdlane else 2)
        if c.kind == 'vmem' and ps & c.r: n = max(n, 5)
        if c.kind == 'salu' and ps & c.r: n = max(n, 1)
    if p.kind == 'mfma':
        big = {4: 8, 8: 12}[p.passes]
        if c.kind == 'mfma':
            if p.w & (c.A | c.B): n = max(n, big)
            if p.w & c.C and not (p.w == c.C and p.passes == c.passes): n = max(n, big - 2)
            if p.w & c.w and not (p.w == c.C and p.passes == c.passes): n = max(n, big - 2)
        elif c.kind in ('valu', 'ds', 'vmem'):
            if p.w & (c.r | c.w): n = max(n, big)
        if c.kind == 'valu' and p.C & c.w: n = max(n, {4: 3, 8: 7}[p.passes])
    if p.kind == 'salu' and ('m0', 0) in p.w and c.ldsdma: n = max(n, 1)
    if p.kind == 'vmem' and p.wide_store and p.data & c.w:
        n = max(n, 2 if c.kind == 'valu' else 1)
    return n

class Prog:
    def __init__(self):
        self.items = []
        self.vm = []
    def __call__(self, s, tag=None):
        for l in s.strip('\n').split('\n'):
            l = l.strip()
            if not l or l.startswith(';'): continue
            if l.endswith(':'):
                self.items.append(('l', l[:-1])); continue
            self.items.append(('i', l))
            mn = l.split()[0]
            if mn.startswith(('buffer_', 'global_')) and tag != 'untracked':
                self.vm.append(tag)
    def raw(self, s): self.items.append(('raw', s))
    def comment(self, s): self.items.append(('raw', '    ; ' + s))
    def vm_after(self, tags):
        if not isinstance(tags, (list, tuple, set)): tags = [tags]
        idx = max(i for i, t in enumerate(self.vm) if t in tags)
        return len(self.vm) - 1 - idx
    def wait_vm(self, tags, extra=''):
        n = min(self.vm_after(tags), 63)
        self(f"s_waitcnt vmcnt({n}) {extra}".strip())
    def text(self):
        out = []; hist = []; pos = 0; nops = 0
        for kind, t in self.items:
            if kind == 'raw': out.append(t); continue
            if kind == 'l': out.append(t + ':'); continue
            c = Ins(t)
            req = 0
            for (pp, p) in hist:
                d = pos - pp
                nd = need(p, c)
                if nd > d: req = max(req, nd - d)
            while req > 0:
                k = min(req, 16)
                out.append(f"    s_nop {k-1}"); pos += k; req -= k; nops += 1
            out.append('    ' + t)
            pos += c.states
            hist.append((pos, c))
            hist = [(pp, p) for (pp, p) in hist if pos - pp < 24]
        self.nops = nops
        return '\n'.join(out) + '\n'
```

```python
import sys, math, struct
from prog import Prog

NAME = 'gated_mix__spectral_fnet__mixer_gmlp__prompt_kernel'

def f2u(x): return struct.unpack('<I', struct.pack('<f', x))[0]
def fh(x): return f"0x{f2u(x):08x}"

WS_Z2N = 0
WS_H = 0x400000
WS_V = 0x800000
WS_ST = 0xC00000
WS_G = 0xC80000
WS_FC = 0xC90000
WS_FV = 0xCA0000
WS_STAMP = 0xD00000
WS_SIZE = 0x1000000
XW = 16 * 1040 + 16
RING = 66816
SLOT = 16384
NSLOT = 5
VASM = RING + 4 * XW
GATE = 163840 - 4096
RED = 0
WO0 = 106496
WO1 = 0
VT = 57344
RED3 = 90112
LDS_TOTAL = 163840
SPIN_LIMIT = 200000

sX, sHRE, sHIM, sWIN, sWSP, sWOUT, sOUT, sWS, sDBG, sBSP, sGATE = [f"s[{8+4*i}:{11+4*i}]" for i in range(11)]
SRD = dict(X=8, HRE=12, HIM=16, WIN=20, WSP=24, WOUT=28, OUT=32, WS=36, DBG=40, BSP=44, GATE=48)
sRB, sCB, sW, sROT, sT0, sT1, sROT2 = 's52', 's53', 's54', 's55', 's56', 's57', 's58'
sM1, sM2, sLT4, sLO32, sC0 = 's[60:61]', 's[62:63]', 's[64:65]', 's[66:67]', 's[68:69]'
sRET = 's[70:71]'
sOFF = ['s72', 's73', 's74', 's75']
sA, sB, sC, sD, sE, sF = 's76', 's77', 's78', 's79', 's80', 's81'
sCNT = 's82'
sXWB = 's83'
sZB = 's84'
sSAVE = 's[86:87]'
sZST = 's88'
sHST = 's89'
sHS1 = 's90'
sSTAMP = 's[92:93]'
sSTB = 's94'

vL16, vL16b, vC, vQ, vBsp, vG = 'v1', 'v2', 'v3', 'v4', 'v5', 'v6'
vXsrc, vWinSrc, vWdBase, vWspSrc, vWspRd, vZst = 'v7', 'v8', 'v9', 'v10', 'v11', 'v12'
vChk = 'v13'
T = [f'v{i}' for i in range(14, 32)]
Z1 = 32
ACC = 60
BUF = [172, 200, 228, 144]
Z2 = 60; ACA = 88; G2O = 108; COEF = 140; CFR = 156
FB = [172, 200]
vWinRd = [f'v{228+i}' for i in range(7)]
vWdRd = [f'v{236+i}' for i in range(4)]
vGateRd, vXrd1, vXrd2, vWdSrc = 'v240', 'v241', 'v242', 'v243'
MEANI = 244
XF1, XF2 = 128, 192

def vr(b, n=4): return f"v[{b}:{b+n-1}]"
def ar(b, n=4): return f"a[{b}:{b+n-1}]"

def gen(stamps=False, opt=None):
    opt = opt or {}
    p = Prog()
    nst = [0]
    def stamp(name):
        if not stamps: return
        i = nst[0]; nst[0] += 1
        p(f"""s_memrealtime {sSTAMP}
        s_waitcnt lgkmcnt(0)
        v_mov_b32 v31, s92
        v_mov_b32 v30, 0
        s_mov_b64 exec, 1""")
        p(f"buffer_store_dword v31, v30, {sWS}, {sSTB} offen offset:{4*i}", tag='untracked')
        p("s_mov_b64 exec, -1")
        STAMPN.append(name)
    global STAMPN
    STAMPN = []

    p.raw(f"; @launch grid=(256,1,1) block=(256,1,1) lds={LDS_TOTAL}")
    p.raw('.amdgcn_target "amdgcn-amd-amdhsa--gfx950"')
    p.raw(f".text\n.globl {NAME}\n.p2align 8\n.type {NAME},@function\n{NAME}:")
    p(f"""
    s_cmp_ge_u32 s2, 256
    s_cbranch_scc1 L_end
    s_load_dwordx2 s[8:9], s[0:1], 0
    s_load_dwordx2 s[20:21], s[0:1], 48
    s_load_dwordx2 s[36:37], s[0:1], 104
    s_load_dwordx2 s[40:41], s[0:1], 96
    s_load_dwordx2 s[12:13], s[0:1], 24
    s_load_dwordx2 s[16:17], s[0:1], 32
    s_load_dwordx2 s[24:25], s[0:1], 56
    s_load_dwordx2 s[28:29], s[0:1], 72
    s_load_dwordx2 s[32:33], s[0:1], 88
    s_load_dwordx2 s[44:45], s[0:1], 64
    s_load_dwordx2 s[48:49], s[0:1], 80
    s_memrealtime s[56:57]
    v_lshrrev_b32 v14, 6, v0
    v_and_b32 v0, 63, v0
    v_readfirstlane_b32 {sW}, v14
    s_and_b32 {sA}, s2, 7
    s_lshr_b32 {sB}, s2, 3
    s_lshr_b32 {sRB}, {sA}, 1
    s_lshl_b32 {sRB}, {sRB}, 3
    s_lshr_b32 {sC}, {sB}, 2
    s_add_u32 {sRB}, {sRB}, {sC}
    s_and_b32 {sCB}, {sA}, 1
    s_lshl_b32 {sCB}, {sCB}, 2
    s_and_b32 {sC}, {sB}, 3
    s_add_u32 {sCB}, {sCB}, {sC}
    s_and_b32 {sROT}, {sRB}, 7
    s_lshr_b32 {sROT2}, {sRB}, 1
    s_mul_i32 {sXWB}, {sW}, {XW}
    v_lshlrev_b32 {vL16}, 4, v0
    v_add_u32 {vL16b}, 4096, {vL16}
    v_and_b32 {vC}, 15, v0
    v_lshrrev_b32 {vQ}, 4, v0
    """)
    sizes = dict(X=2048*1024, HRE=512*1024, HIM=512*1024, WIN=512*3584, WSP=2048*4096, WOUT=896*1024,
                 OUT=2048*1024, WS=WS_SIZE, DBG=256, BSP=4096, GATE=1024)
    for k, b in SRD.items():
        p(f"s_mov_b32 s{b+2}, {sizes[k]}\ns_mov_b32 s{b+3}, 0x20000")
    p(f"""
    s_lshl_b32 {sA}, {sROT}, 7
    v_add_u32 {vXsrc}, {sA}, {vL16}
    v_and_b32 {vXsrc}, 1023, {vXsrc}
    """)
    p(f"""
    s_lshr_b32 {sA}, {sW}, 1
    s_lshl_b32 {sA}, {sA}, 2
    v_add_u32 v14, {sA}, {vQ}
    v_lshlrev_b32 v14, 1, v14
    v_xor_b32 v14, v14, {vC}
    v_lshlrev_b32 v14, 4, v14
    s_lshl_b32 {sA}, {sW}, 2
    v_add_u32 v15, {sA}, {vQ}
    v_mul_u32_u24 v16, 3584, v15
    s_mul_i32 {sA}, {sCB}, 224
    s_and_b32 {sB}, {sCB}, 1
    s_lshl_b32 {sC}, {sB}, 5
    s_sub_u32 {sA}, {sA}, {sC}
    v_add3_u32 {vWinSrc}, v14, v16, {sA}
    s_waitcnt lgkmcnt(0)
    """)
    if stamps:
        p(f"""s_lshl_b32 {sSTB}, s2, 2
        s_add_u32 {sSTB}, {sSTB}, {sW}
        s_lshl_b32 {sSTB}, {sSTB}, 8
        s_add_u32 {sSTB}, {sSTB}, {WS_STAMP}""")
    p(f"""
    s_or_b32 {sT0}, {sT0}, 1
    s_or_b32 {sA}, s2, {sW}
    s_cmp_lg_u32 {sA}, 0
    s_cbranch_scc1 L_notag
    v_mov_b32 v18, {sT0}
    v_mov_b32 v19, {sT1}
    v_mov_b32 v17, 0
    s_mov_b64 exec, 1
    """)
    p(f"buffer_store_dwordx2 v[18:19], v17, {sDBG}, 0 offen sc1", tag='untracked')
    p("""s_mov_b64 exec, -1
    L_notag:""")
    stamp('start')

    def dma(voff, srd, soff, m0expr_setup, tag, imm=0, flags=''):
        p(m0expr_setup)
        o = f" offset:{imm}" if imm else ''
        p(f"buffer_load_dwordx4 {voff}, {srd}, {soff} offen{o} {flags} lds".replace('  ', ' '), tag=tag)

    XFL = opt.get('xfl', '')
    WFL = opt.get('wfl', '')
    SFL = opt.get('sfl', '')
    def x_group(g):
        p(f"""s_add_u32 {sA}, {sCB}, {g}
        s_and_b32 {sA}, {sA}, 3
        s_lshl_b32 {sB}, {sW}, 2
        s_add_u32 {sB}, {sB}, {sA}
        s_lshl_b32 {sB}, {sB}, 17
        s_lshl_b32 {sC}, {sRB}, 12
        s_add_u32 {sB}, {sB}, {sC}
        s_mul_i32 {sA}, {sA}, {4*1040}
        s_add_u32 {sA}, {sA}, {sXWB}""")
        for i in range(4):
            dma(vXsrc, sX, sB, f"s_add_u32 m0, {sA}, {i*16}", 'x', imm=i*1024, flags=XFL)

    def chunk_dma(n):
        slot = RING + (n % NSLOT) * SLOT
        if n < 16:
            hf = 1792 if n < 8 else 0
            p(f"""s_add_u32 {sA}, {sROT}, {n}
            s_and_b32 {sA}, {sA}, 7
            s_mul_i32 {sA}, {sA}, {64*3584}
            s_lshl_b32 {sB}, {sW}, 10""")
            for jj in range(4):
                p(f"s_add_u32 {sC}, {sA}, {jj*16*3584 + hf}")
                dma(vWinSrc, sWIN, sC, f"s_add_u32 m0, {sB}, {slot + jj*4096}", ('ch', n), flags=WFL)
        else:
            m = n - 16
            p(f"""v_add_u32 {vWdSrc}, {256*m}, {vWdBase}
            v_and_b32 {vWdSrc}, 1023, {vWdSrc}
            s_lshl_b32 {sA}, {sW}, 2
            v_add_u32 v14, {sA}, {vQ}
            v_lshl_add_u32 {vWdSrc}, v14, 10, {vWdSrc}
            s_lshl_b32 {sA}, {sCB}, 15
            s_lshl_b32 {sB}, {sW}, 10""")
            for jj in range(4):
                p(f"s_add_u32 {sC}, {sA}, {(jj&1)*16384}")
                dma(vWdSrc, sHRE if jj < 2 else sHIM, sC, f"s_add_u32 m0, {sB}, {slot + jj*4096}", ('ch', n), flags=WFL)

    x_group(0)
    chunk_dma(0)
    for g in range(1, 4): x_group(g)
    for n in range(1, 4): chunk_dma(n)
    p(f"s_lshl_b32 {sA}, {sW}, 10")
    dma(vXsrc, sGATE, '0', f"s_add_u32 m0, {sA}, {GATE}", 'gate')
    p(f"""
    s_lshl_b32 {sA}, {sRB}, 2
    s_add_u32 {sA}, {sA}, {sW}
    s_lshl_b32 {sA}, {sA}, 1
    v_lshlrev_b32 v14, 8, {vC}
    """)
    p(f"buffer_load_ushort {vBsp}, v14, {sBSP}, {sA} offen", tag='bsp')
    p(f"""
    v_lshrrev_b32 v14, 2, {vC}
    v_lshl_add_u32 v15, {vQ}, 3, v14
    v_lshlrev_b32 v15, 8, v15
    v_and_b32 v16, 3, {vC}
    v_lshl_add_u32 v15, v16, 3, v15
    v_add_u32 v15, {RING}, v15
    v_and_b32 v16, 1, {vQ}
    v_lshl_add_u32 v16, v16, 2, v14
    s_and_b32 {sB}, {sCB}, 1
    """)
    for ft in range(7):
        p(f"""s_add_u32 {sA}, {sB}, {ft}
        v_xor_b32 v17, {sA}, v16
        v_lshl_add_u32 {vWinRd[ft]}, v17, 5, v15""")
    p(f"""
    v_mul_u32_u24 v14, 1040, {vC}
    v_lshl_add_u32 v14, {vQ}, 4, v14
    v_add_u32 {vXrd1}, {sXWB}, v14
    v_mul_u32_u24 v14, {4*1040}, {vC}
    v_lshrrev_b32 v15, 2, {vC}
    v_add_u32 v15, v15, {vQ}
    v_lshl_add_u32 v14, v15, 4, v14
    s_mul_i32 {sA}, {sW}, 1040
    v_add_u32 {vXrd2}, {sA}, v14
    s_lshl_b32 {sA}, {sW}, 2
    v_add_u32 v14, {sA}, {vQ}
    v_xor_b32 v14, v14, {vC}
    s_lshl_b32 {sA}, {sROT}, 3
    v_add_lshl_u32 {vWdBase}, v14, {sA}, 4
    s_lshl_b32 {sA}, {sW}, 10
    s_add_u32 {sA}, {sA}, {GATE}
    v_lshl_add_u32 {vGateRd}, {vQ}, 4, {sA}
    v_xor_b32 v14, {sROT2}, {vC}
    v_lshlrev_b32 v14, 4, v14
    v_lshl_add_u32 v14, {vQ}, 8, v14
    s_lshl_b32 {sA}, {sW}, 10
    v_add_u32 {vWspSrc}, {sA}, v14
    v_mul_u32_u24 v14, 1040, {vC}
    v_lshrrev_b32 v15, 1, {vQ}
    v_lshl_add_u32 v14, v15, 8, v14
    v_and_b32 v15, 1, {vQ}
    v_lshl_add_u32 v14, v15, 3, v14
    v_add_u32 {vWspRd}, {sXWB}, v14
    v_lshrrev_b32 v14, 1, {vQ}
    v_lshlrev_b32 v14, 10, v14
    v_and_b32 v15, 1, {vQ}
    v_lshl_add_u32 v14, v15, 9, v14
    v_lshl_add_u32 v14, {vC}, 4, v14
    s_and_b32 {sA}, {sRB}, 1
    s_lshl_b32 {sA}, {sA}, 8
    v_add_u32 {vZst}, {sA}, v14
    ; bases
    s_lshl_b32 {sA}, {sCB}, 2
    s_add_u32 {sA}, {sA}, {sW}
    s_mul_i32 {sZB}, {sA}, {16*7168}
    s_mul_i32 {sA}, {sROT2}, 7168
    s_add_u32 {sZST}, {sZB}, {sA}
    s_lshl_b32 {sA}, {sRB}, 2
    s_add_u32 {sA}, {sA}, {sW}
    s_mul_i32 {sA}, {sA}, 28
    s_lshr_b32 {sB}, {sCB}, 1
    s_mul_i32 {sB}, {sB}, 7
    s_add_u32 {sA}, {sA}, {sB}
    s_lshl_b32 {sA}, {sA}, 10
    s_add_u32 {sA}, {sA}, {WS_H}
    s_and_b32 {sB}, {sCB}, 1
    s_mul_i32 {sC}, {sB}, 3072
    s_add_u32 {sHST}, {sA}, {sC}
    s_lshl_b32 {sC}, {sB}, 9
    s_add_u32 {sHS1}, {sA}, {sC}
    s_add_u32 {sHS1}, {sHS1}, 6144
    v_and_b32 v14, 1, {vC}
    v_cmp_ne_u32 {sM1}, 0, v14
    v_and_b32 v14, 2, {vC}
    v_cmp_ne_u32 {sM2}, 0, v14
    v_cmp_gt_u32 {sLT4}, 4, {vC}
    v_cmp_eq_u32 {sC0}, 0, {vC}
    s_mov_b32 s66, -1
    s_mov_b32 s67, 0
    """)
    for ks in range(4):
        p(f"""v_add_u32 v14, {4*ks}, {vQ}
        v_xor_b32 v14, v14, {vC}
        v_lshlrev_b32 v14, 4, v14
        v_lshl_add_u32 v14, {vC}, 8, v14
        v_add_u32 {vWdRd[ks]}, {RING}, v14""")

    def z2n_stores(base, tag):
        p(f"buffer_store_dwordx4 {vr(base(0))}, {vZst}, {sWS}, {sZST} offen sc1", tag=tag)
        p(f"buffer_store_dwordx4 {vr(base(1))}, {vZst}, {sWS}, {sZST} offen offset:2048 sc1", tag=tag)
        p(f"s_add_u32 {sA}, {sZST}, 4096")
        p(f"buffer_store_dwordx4 {vr(base(2))}, {vZst}, {sWS}, {sA} offen sc1", tag=tag)
        p(f"s_mov_b64 exec, {sLO32}")
        p(f"buffer_store_dwordx4 {vr(base(3))}, {vZst}, {sWS}, {sA} offen offset:2048 sc1", tag=tag)
        p("s_mov_b64 exec, -1")
    def h_stores(base, tag):
        for i in range(3):
            p(f"buffer_store_dwordx4 {vr(base(i))}, {vL16}, {sWS}, {sHST} offen offset:{1024*i} sc1", tag=tag)
        p(f"s_mov_b64 exec, {sLO32}")
        p(f"buffer_store_dwordx4 {vr(base(3))}, {vL16}, {sWS}, {sHS1} offen sc1", tag=tag)
        p("s_mov_b64 exec, -1")
    for i in range(4): p(f"v_mov_b32 v{24+i}, -1")
    z2n_stores(lambda i: 24, 'clr')
    h_stores(lambda i: 24, 'clr')
    p("v_mov_b32 v17, 0")
    p(f"buffer_load_dwordx2 v[22:23], v17, {sDBG}, 0 offen sc1", tag='tag')
    for i in range(28): p(f"v_mov_b32 v{Z2+i}, 0")
    for i in range(28): p(f"v_mov_b32 v{Z1+i}, 0")
    for i in range(20): p(f"v_mov_b32 v{ACA+i}, 0")

    p.wait_vm('x')
    p("s_barrier")
    stamp('x_in')
    for n in range(16): p(f"ds_read_b128 {ar(XF1+4*n)}, {vXrd1} offset:{64*n}")
    for n in range(16): p(f"ds_read_b128 {ar(XF2+4*n)}, {vXrd2} offset:{64*n}")

    def wsp_dma(u, ldsbase):
        p(f"""s_xor_b32 {sA}, {sW}, {u}
        s_lshl_b32 {sB}, {sRB}, 2
        s_add_u32 {sA}, {sA}, {sB}
        s_lshl_b32 {sA}, {sA}, 12
        s_and_b32 {sB}, {sCB}, 3""")
        for g in range(4):
            p(f"""s_xor_b32 {sC}, {sB}, {g}
            s_lshl_b32 {sD}, {sC}, 21
            s_add_u32 {sD}, {sD}, {sA}
            s_mul_i32 {sC}, {sC}, {4*1040}
            s_add_u32 {sC}, {sC}, {sXWB}""")
            for i in range(4):
                p(f"s_add_u32 {sE}, {sD}, {i << 19}")
                dma(vWspSrc, sWSP, sE, f"s_add_u32 m0, {sC}, {ldsbase + i*1040}", ('wsp', u), flags=SFL)
    def wsp_read(u, ldsbase):
        p.wait_vm(('wsp', u) ,) if False else p.wait_vm([('wsp', u)])
        rd = vWspRd
        if ldsbase:
            p(f"v_add_u32 v14, {ldsbase}, {vWspRd}"); rd = 'v14'
        for k in range(16):
            b = 64 * u + 4 * k
            p(f"ds_read_b64 {ar(b,2)}, {rd} offset:{16*k}")
            p(f"ds_read_b64 {ar(b+2,2)}, {rd} offset:{16*k+512}")
        p("s_waitcnt lgkmcnt(0)")

    cur_slot_adj = [0]
    def win_reads(n, ks, fb):
        slot = (n % NSLOT) * SLOT
        want = 0 if slot + 16384 <= 65536 else 32768
        if want != cur_slot_adj[0]:
            d = want - cur_slot_adj[0]
            for r in vWinRd + vWdRd:
                p(f"v_add_u32 {r}, {d & 0xffffffff}, {r}" if d > 0 else f"v_subrev_u32 {r}, {-d}, {r}")
            cur_slot_adj[0] = want
        off = slot - want
        if n < 16:
            for ft in range(7):
                for h in range(2):
                    p(f"ds_read_b64_tr_b16 {vr(fb+4*ft+2*h,2)}, {vWinRd[ft]} offset:{off + ks*8192 + h*1024}")
        else:
            for x in range(4):
                p(f"ds_read_b128 {vr(fb+4*x)}, {vWdRd[ks]} offset:{off + x*4096}")
            p(f"ds_read_b128 {vr(fb+16)}, {vGateRd} offset:{(4*(n-16)+ks)*64}")
    def win_mfma(n, ks, fb):
        if n < 8:
            xf = XF1 + 4 * (2 * n + ks)
            for ft in range(7):
                p(f"v_mfma_f32_16x16x32_bf16 {vr(Z2+4*ft)}, {ar(xf)}, {vr(fb+4*ft)}, {vr(Z2+4*ft)}")
        elif n < 16:
            xf = XF2 + 4 * (2 * (n - 8) + ks)
            for ft in range(7):
                p(f"v_mfma_f32_16x16x32_bf16 {vr(Z1+4*ft)}, {vr(fb+4*ft)}, {ar(xf)}, {vr(Z1+4*ft)}")
        else:
            xf = XF2 + 4 * (4 * (n - 16) + ks)
            for x in range(4):
                p(f"v_mfma_f32_16x16x32_bf16 {vr(ACA+4*x)}, {ar(xf)}, {vr(fb+4*x)}, {vr(ACA+4*x)}")
            p(f"v_mfma_f32_16x16x32_bf16 {vr(ACA+16)}, {vr(fb+16)}, {ar(xf)}, {vr(ACA+16)}")

    def chunk(n, post_barrier=None):
        p.wait_vm([('ch', n)])
        if n >= 16:
            lab = f"L_nop{n}"
            p(f"""s_or_b32 {sA}, {sCB}, {sW}
            s_cmp_lg_u32 {sA}, 0
            s_cbranch_scc1 {lab}
            v_mov_b32 v16, 0xbf803f80
            v_mov_b32 v17, v16
            v_mov_b32 v18, v16
            v_mov_b32 v19, v16
            v_add_u32 v20, {RING + (n % NSLOT)*SLOT + 8192}, {vL16}
            s_mov_b64 exec, 0xffff
            ds_write_b128 v20, v[16:19]
            s_mov_b64 exec, -1
            s_waitcnt lgkmcnt(0)
            {lab}:""")
        p("s_barrier")
        if n + 4 < 20: chunk_dma(n + 4)
        if post_barrier: post_barrier()
        nks = 2 if n < 16 else 4
        cnt = 14 if n < 16 else 5
        win_reads(n, 0, FB[0])
        for ks in range(nks):
            if ks + 1 < nks:
                win_reads(n, ks + 1, FB[(ks + 1) & 1])
                p(f"s_waitcnt lgkmcnt({cnt})")
            else:
                p("s_waitcnt lgkmcnt(0)")
            win_mfma(n, ks, FB[ks & 1])

    C0 = -2.0 * math.sqrt(2.0 / math.pi) * math.log2(math.e)
    C1 = C0 * 0.044715
    def gelu(base, n):
        p(f"s_mov_b32 {sA}, {fh(C1)}\ns_mov_b32 {sB}, {fh(C0)}")
        p(f"v_mov_b32 v22, {sB}" if False else "s_nop 0")
        for g in range(0, n, 4):
            t = [14, 15, 16, 17]
            for i in range(4): p(f"v_mul_f32 v{t[i]}, v{base+g+i}, v{base+g+i}")
            for i in range(4): p(f"v_fmaak_f32 v{t[i]}, {sA}, v{t[i]}, {fh(C0)}" if False else f"v_fma_f32 v{t[i]}, v{t[i]}, {sA}, v21")
            for i in range(4): p(f"v_mul_f32 v{t[i]}, v{t[i]}, v{base+g+i}")
            for i in range(4): p(f"v_exp_f32 v{t[i]}, v{t[i]}")
            for i in range(4): p(f"v_add_f32 v{t[i]}, 1.0, v{t[i]}")
            for i in range(4): p(f"v_rcp_f32 v{t[i]}, v{t[i]}")
            for i in range(4): p(f"v_mul_f32 v{base+g+i}, v{base+g+i}, v{t[i]}")
    def rowred(regs, rors):
        for k in rors:
            for r in regs: p(f"v_add_f32_dpp {r}, {r}, {r} row_ror:{k} row_mask:0xf bank_mask:0xf")

    def get_tag():
        p.wait_vm('tag')
        p(f"""s_mov_b32 {sCNT}, 0
        L_tag:
        v_readfirstlane_b32 {sT0}, v22
        v_readfirstlane_b32 {sT1}, v23
        s_cmp_lg_u32 {sT0}, 0
        s_cbranch_scc1 L_tagok
        s_add_u32 {sCNT}, {sCNT}, 1
        s_cmp_ge_u32 {sCNT}, {SPIN_LIMIT}
        s_cbranch_scc1 L_tagok
        v_mov_b32 v17, 0""")
        p(f"buffer_load_dwordx2 v[22:23], v17, {sDBG}, 0 offen sc1", tag='untracked')
        p("""s_waitcnt vmcnt(0)
        s_branch L_tag
        L_tagok:""")

    def flag_store(base):
        lab = f"L_fs{base:x}"
        p(f"""s_cmp_lg_u32 {sW}, 0
        s_cbranch_scc1 {lab}
        s_lshl_b32 {sA}, s2, 3
        s_add_u32 {sA}, {sA}, {base}
        v_mov_b32 v18, {sT0}
        v_mov_b32 v19, {sT1}
        v_mov_b32 v17, 0
        s_mov_b64 exec, 1""")
        p(f"buffer_store_dwordx2 v[18:19], v17, {sWS}, {sA} offen sc1", tag='untracked')
        p(f"s_mov_b64 exec, -1\n{lab}:")
    def flag_wait(base):
        lab = f"L_fw{base:x}"
        p(f"""s_mov_b32 {sCNT}, 0
        s_mov_b32 {sA}, {base}
        {lab}:""")
        p(f"buffer_load_dwordx4 v[16:19], {vL16}, {sWS}, {sA} offen sc1", tag='untracked')
        p(f"buffer_load_dwordx4 v[20:23], {vL16}, {sWS}, {sA} offen offset:1024 sc1", tag='untracked')
        p(f"""s_waitcnt vmcnt(0)
        v_xor_b32 v16, {sT0}, v16
        v_xor_b32 v17, {sT1}, v17
        v_xor_b32 v18, {sT0}, v18
        v_xor_b32 v19, {sT1}, v19
        v_xor_b32 v20, {sT0}, v20
        v_xor_b32 v21, {sT1}, v21
        v_xor_b32 v22, {sT0}, v22
        v_xor_b32 v23, {sT1}, v23
        v_or3_b32 v16, v16, v17, v18
        v_or3_b32 v19, v19, v20, v21
        v_or3_b32 v16, v16, v22, v23
        v_or_b32 v16, v16, v19
        v_cmp_ne_u32 vcc, 0, v16
        s_add_u32 {sCNT}, {sCNT}, 1
        s_cmp_ge_u32 {sCNT}, {SPIN_LIMIT}
        s_cbranch_scc1 {lab}_ok
        s_cbranch_vccnz {lab}
        {lab}_ok:""")

    for n in range(8):
        if n == 4:
            get_tag()
            chunk(n, post_barrier=lambda: flag_store(WS_FC))
        else:
            chunk(n)
    stamp('z2_mfma')
    p(f"v_mov_b32 v21, {fh(C0)}")
    gelu(Z2, 28)
    S = [f'v{14+r}' for r in range(4)]
    for r in range(4):
        p(f"v_add_f32 {S[r]}, v{Z2+r}, v{Z2+4+r}")
    for ft in range(2, 7):
        for r in range(4): p(f"v_add_f32 {S[r]}, {S[r]}, v{Z2+4*ft+r}")
    rowred(S, [8, 4, 2, 1])
    for r in range(4): p(f"v_mul_f32 v{MEANI+r}, {fh(1.0/112)}, {S[r]}")
    for ft in range(7):
        for r in range(4): p(f"v_sub_f32 v{Z2+4*ft+r}, v{Z2+4*ft+r}, v{MEANI+r}")
    for r in range(4): p(f"v_mul_f32 {S[r]}, v{Z2+r}, v{Z2+r}")
    for ft in range(1, 7):
        for r in range(4): p(f"v_fmac_f32 {S[r]}, v{Z2+4*ft+r}, v{Z2+4*ft+r}")
    rowred(S, [8, 4, 2, 1])
    p(f"""
    v_cndmask_b32 v18, v{MEANI}, v{MEANI+1}, {sM1}
    v_cndmask_b32 v19, v{MEANI+2}, v{MEANI+3}, {sM1}
    v_cndmask_b32 v24, v18, v19, {sM2}
    v_cndmask_b32 v18, v14, v15, {sM1}
    v_cndmask_b32 v19, v16, v17, {sM1}
    v_cndmask_b32 v25, v18, v19, {sM2}
    v_mov_b32 v26, {sT0}
    v_mov_b32 v27, {sT1}
    v_and_b32 v18, 3, {vC}
    v_lshl_add_u32 v18, {vQ}, 2, v18
    v_lshlrev_b32 v248, 4, v18
    s_lshl_b32 {sA}, {sRB}, 13
    s_lshl_b32 {sB}, {sW}, 8
    s_add_u32 {sF}, {sA}, {sB}
    s_add_u32 {sF}, {sF}, {WS_ST}
    s_lshl_b32 {sB}, {sCB}, 10
    s_add_u32 {sA}, {sF}, {sB}
    s_mov_b64 exec, {sLT4}
    """)
    p(f"buffer_store_dwordx4 v[24:27], v248, {sWS}, {sA} offen sc1", tag='st')
    p(f"""s_mov_b64 exec, -1
    v_lshrrev_b32 v18, 2, {vC}
    v_lshl_add_u32 v248, v18, 10, v248
    v_add_u32 v249, 4096, v248""")
    stamp('stats_pub')
    for n in range(8, 16):
        if n == 10: chunk(n, post_barrier=lambda: wsp_dma(0, 0))
        else: chunk(n)
    stamp('z1_mfma')
    p(f"v_mov_b32 v21, {fh(C0)}")
    gelu(Z1, 28)
    wsp_read(0, 0)
    stamp('z1_gelu')
    p(f"""s_mov_b32 {sCNT}, 0
    L_stat:""")
    p(f"buffer_load_dwordx4 v[16:19], v248, {sWS}, {sF} offen sc1", tag='untracked')
    p(f"buffer_load_dwordx4 v[20:23], v249, {sWS}, {sF} offen sc1", tag='untracked')
    p(f"""s_waitcnt vmcnt(0)
    v_xor_b32 v24, {sT0}, v18
    v_xor_b32 v25, {sT1}, v19
    v_xor_b32 v26, {sT0}, v22
    v_xor_b32 v27, {sT1}, v23
    v_or3_b32 v24, v24, v25, v26
    v_or_b32 v24, v24, v27
    v_cmp_ne_u32 vcc, 0, v24
    s_add_u32 {sCNT}, {sCNT}, 1
    s_cmp_ge_u32 {sCNT}, {SPIN_LIMIT}
    s_cbranch_scc1 L_statok
    s_cbranch_vccnz L_stat
    L_statok:""")
    stamp('stats_in')
    wsp_dma(1, 0)
    p("v_add_f32 v24, v16, v20")
    rowred(['v24'], [4, 8])
    p(f"""v_mul_f32 v24, 0.125, v24""".replace('0.125', fh(0.125)))
    p(f"""v_sub_f32 v16, v16, v24
    v_sub_f32 v20, v20, v24
    v_mul_f32 v16, v16, v16
    v_fmac_f32 v16, v20, v20
    v_add_f32 v17, v17, v21
    v_fmac_f32 v17, {fh(112.0)}, v16""")
    rowred(['v17'], [4, 8])
    p(f"""v_mov_b32 v18, {fh(1e-5)}
    v_fmac_f32 v18, {fh(1.0/896)}, v17
    v_rsq_f32 v25, v18""")
    for r in range(4):
        p(f"v_mov_b32_dpp v{14+r}, v25 quad_perm:[{r},{r},{r},{r}] row_mask:0xf bank_mask:0xf")
        p(f"v_mov_b32_dpp v{18+r}, v24 quad_perm:[{r},{r},{r},{r}] row_mask:0xf bank_mask:0xf")
    for r in range(4):
        p(f"v_sub_f32 v{18+r}, v{MEANI+r}, v{18+r}")
    for r in range(4):
        p(f"v_mul_f32 v{18+r}, v{18+r}, v{14+r}")
    for ft in range(7):
        for r in range(4): p(f"v_fma_f32 v{Z2+4*ft+r}, v{Z2+4*ft+r}, v{14+r}, v{18+r}")
    PK = G2O
    def pack_tiles(src, swap_pairs):
        for ft in range(7):
            p(f"v_cvt_pk_bf16_f32 v{PK+2*ft}, v{src+4*ft}, v{src+4*ft+1}")
            p(f"v_cvt_pk_bf16_f32 v{PK+2*ft+1}, v{src+4*ft+2}, v{src+4*ft+3}")
        for i in range(14): p(f"v_min_u32 v{PK+i}, -2, v{PK+i}")
        p(f"v_mov_b32 v{PK+14}, v{PK+12}\nv_mov_b32 v{PK+15}, v{PK+13}")
        for pr in (range(4) if swap_pairs else [3]):
            p(f"v_permlane32_swap_b32 v{PK+4*pr}, v{PK+4*pr+2}")
            p(f"v_permlane32_swap_b32 v{PK+4*pr+1}, v{PK+4*pr+3}")
    pack_tiles(Z2, True)
    z2n_stores(lambda i: PK + 4 * i, 'z2n')
    stamp('z2n_pub')
    for n in range(16, 20):
        if n == 18:
            wsp_read(1, 0)
            chunk(n, post_barrier=lambda: wsp_dma(2, 0))
        else: chunk(n)
    p("s_barrier")
    wsp_dma(3, RING)
    stamp('a_mfma')
    p(f"""v_mul_f32 v14, {fh(-math.log2(math.e))}, v{ACA+16}
    v_exp_f32 v14, v14
    v_add_f32 v14, 1.0, v14
    v_rcp_f32 {vG}, v14
    v_sub_f32 v15, 1.0, {vG}""")
    for i in range(28): p(f"v_mul_f32 v{Z1+i}, v{Z1+i}, v15")
    p(f"""s_cmp_lg_u32 {sCB}, 0
    s_cbranch_scc1 L_nog
    s_lshl_b32 {sA}, {sRB}, 2
    s_add_u32 {sA}, {sA}, {sW}
    s_lshl_b32 {sA}, {sA}, 6
    s_add_u32 {sA}, {sA}, {WS_G}
    v_lshlrev_b32 v14, 2, {vC}
    s_mov_b64 exec, 0xffff""")
    p(f"buffer_store_dword {vG}, v14, {sWS}, {sA} offen sc1", tag='untracked')
    p("s_mov_b64 exec, -1\nL_nog:")
    p(f"""v_lshlrev_b32 v14, 2, {vQ}""")
    for r in range(4):
        p(f"""v_add_u32 v15, {r}, v14
        v_mul_u32_u24 v15, v15, {vC}
        v_and_b32 v15, 15, v15
        v_cvt_f32_u32 v15, v15
        v_mul_f32 v15, {fh(1.0/16)}, v15
        v_cos_f32 v{16+r}, v15
        v_sin_f32 v{20+r}, v15""")
    p(f"""v_cvt_pk_bf16_f32 v{COEF}, v16, v17
    v_cvt_pk_bf16_f32 v{COEF+1}, v18, v19
    v_cvt_pk_bf16_f32 v{COEF+2}, v20, v21
    v_cvt_pk_bf16_f32 v{COEF+3}, v22, v23
    v_xor_b32 v{COEF+4}, 0x80008000, v{COEF+2}
    v_xor_b32 v{COEF+5}, 0x80008000, v{COEF+3}
    v_mov_b32 v{COEF+6}, v{COEF}
    v_mov_b32 v{COEF+7}, v{COEF+1}
    v_mov_b32 v{COEF+8}, v{COEF}
    v_mov_b32 v{COEF+9}, v{COEF+1}
    v_mov_b32 v{COEF+10}, v{COEF+4}
    v_mov_b32 v{COEF+11}, v{COEF+5}
    v_mov_b32 v{COEF+12}, v{COEF+4}
    v_mov_b32 v{COEF+13}, v{COEF+5}
    v_xor_b32 v{COEF+14}, 0x80008000, v{COEF}
    v_xor_b32 v{COEF+15}, 0x80008000, v{COEF+1}""")
    for x in range(2):
        p(f"""v_cvt_pk_bf16_f32 v{CFR+4*x}, v{ACA+4*x}, v{ACA+4*x+1}
        v_cvt_pk_bf16_f32 v{CFR+4*x+1}, v{ACA+4*x+2}, v{ACA+4*x+3}
        v_cvt_pk_bf16_f32 v{CFR+4*x+2}, v{ACA+8+4*x}, v{ACA+8+4*x+1}
        v_cvt_pk_bf16_f32 v{CFR+4*x+3}, v{ACA+8+4*x+2}, v{ACA+8+4*x+3}""")
    for x in range(2):
        for var in range(4):
            p(f"v_mfma_f32_16x16x32_bf16 {vr(G2O+16*x+4*var)}, {vr(COEF+4*var)}, {vr(CFR+4*x)}, 0")
    p(f"""s_cmp_lg_u32 {sCB}, 0
    s_cbranch_scc1 L_nofix
    s_nop 7
    s_mov_b64 exec, {sC0}""")
    for r in range(4):
        re1, im1, re2, im2 = [f"v{G2O+4*v+r}" for v in range(4)]
        p(f"""v_add_f32 v14, {re1}, {re2}
        v_add_f32 v15, {im1}, {im2}
        v_sub_f32 v16, {im1}, {im2}
        v_sub_f32 v17, {re2}, {re1}
        v_mul_f32 {re1}, 0.5, v14
        v_mul_f32 {im1}, 0.5, v15
        v_mul_f32 {re2}, 0.5, v16
        v_mul_f32 {im2}, 0.5, v17""")
    p("s_mov_b64 exec, -1\nL_nofix:\ns_nop 7")
    p(f"""v_lshlrev_b32 v14, 10, {vQ}
    v_lshl_add_u32 v14, {vC}, 4, v14
    s_lshl_b32 {sA}, {sW}, 2
    s_add_u32 {sA}, {sA}, {VASM}
    v_add_u32 v14, {sA}, v14""")
    k = 0
    for x in range(2):
        for mir in range(2):
            for r in range(4):
                t = f"v{16 + (k % 8)}"; k += 1
                p(f"v_cvt_pk_bf16_f32 {t}, v{G2O+16*x+8*mir+r}, v{G2O+16*x+8*mir+4+r}")
                p(f"ds_write_b32 v14, {t} offset:{mir*8192 + x*4096 + r*256}")
    p("s_waitcnt lgkmcnt(0)\ns_barrier")
    p(f"""s_lshl_b32 {sA}, {sW}, 10
    s_add_u32 {sA}, {sA}, {VASM}
    v_add_u32 v14, {sA}, {vL16}""")
    for it in range(4):
        p(f"ds_read_b128 {vr(G2O+4*it)}, v14 offset:{it*4096}")
    p(f"""s_lshl_b32 {sA}, {sW}, 2
    v_add_u32 v15, {sA}, {vQ}
    v_lshlrev_b32 v15, 18, v15
    s_lshl_b32 {sB}, {sRB}, 8
    s_add_u32 {sB}, {sB}, {WS_V}
    s_lshl_b32 {sA}, {sCB}, 5
    v_add_u32 v16, {sA}, {vC}""")
    for it in range(4):
        mir, x = it >> 1, it & 1
        p(f"v_add_u32 v17, {16*x}, v16")
        if mir:
            p(f"""v_sub_u32 v17, 512, v17
            v_cmp_eq_u32 vcc, 512, v17
            v_mov_b32 v18, 256
            v_cndmask_b32 v17, v17, v18, vcc""")
        p(f"""v_lshrrev_b32 v18, 4, v17
        v_lshl_add_u32 v18, v18, 13, v15
        v_and_b32 v17, 15, v17
        v_lshl_add_u32 v{20+it}, v17, 4, v18""")
    p("s_waitcnt lgkmcnt(0)")
    for it in range(4):
        p(f"buffer_store_dwordx4 {vr(G2O+4*it)}, v{20+it}, {sWS}, {sB} offen sc1", tag='vst')
    stamp('v_pub')
    wsp_read(2, 0)
    wsp_read(3, RING)
    p.wait_vm('vst')
    p("s_barrier")
    flag_store(WS_FV)
    stamp('wsp_in')
    flag_wait(WS_FC)
    stamp('clr_ok')

    def frag_loads(b, tag):
        for ft in range(7):
            v = vL16 if ft < 4 else vL16b
            p(f"buffer_load_dwordx4 {vr(BUF[b]+4*ft)}, {v}, {sWS}, {sOFF[b]} offen offset:{(ft&3)*1024} sc1", tag=tag)
    def check_ops(b):
        r = BUF[b]
        ops = [f"v_max3_u32 {vChk}, v{r}, v{r+1}, v{r+2}"]
        for i in range(3, 27, 2): ops.append(f"v_max3_u32 {vChk}, {vChk}, v{r+i}, v{r+i+1}")
        ops.append(f"v_max_u32 {vChk}, {vChk}, v{r+27}")
        ops.append(f"v_cmp_eq_u32 vcc, -1, {vChk}")
        return ops
    lc = [0]
    def check_branch(b):
        lc[0] += 1
        p(f"""s_cbranch_vccz L_ok{lc[0]}
        s_call_b64 {sRET}, L_retry{b}
        L_ok{lc[0]}:""")
    def z_issue(k):
        b = k % 3
        p(f"""s_xor_b32 {sA}, {sROT2}, {k}
        s_mul_i32 {sA}, {sA}, 7168
        s_add_u32 {sOFF[b]}, {sA}, {sZB}""")
        frag_loads(b, ('z', k))
    def wo_dma(part, ldsbase):
        for jj in range(14):
            g = 4 * jj
            half = g // 28
            row0 = 448 * half + 224 * part + 8 * (g % 28)
            p(f"s_add_u32 {sC}, {sD}, {row0*1024}")
            dma('v29', sWOUT, sC, f"s_add_u32 m0, {sE}, {ldsbase + g*1024}", ('wo', part))
    z_issue(0); z_issue(1)
    for i in range(112): p(f"v_mov_b32 v{ACC+i}, 0")
    p.wait_vm([('z', 0)])
    for o in check_ops(0): p(o)
    check_branch(0)
    stamp('z_first')
    def p2_mfma(k, u, ft):
        acc = ACC + (u * 7 + ft) * 4
        return f"v_mfma_f32_16x16x32_bf16 {vr(acc)}, {vr(BUF[k%3]+4*ft)}, {ar(64*u+4*k)}, {vr(acc)}"
    for k in range(16):
        if k + 2 < 16: z_issue(k + 2)
        if k == 14:
            p(f"""v_lshrrev_b32 v28, 3, v0
            v_lshlrev_b32 v29, 10, v28
            v_and_b32 v28, 7, v0
            v_lshlrev_b32 v27, 1, {vQ}
            v_xor_b32 v28, v28, v27
            v_lshl_add_u32 v29, v28, 4, v29
            s_lshl_b32 {sD}, {sW}, 13
            s_lshl_b32 {sA}, {sCB}, 7
            s_add_u32 {sD}, {sD}, {sA}
            s_lshl_b32 {sE}, {sW}, 10""")
            wo_dma(0, WO0)
        ms = [p2_mfma(k, u, ft) for u in range(4) for ft in range(7)]
        if k + 1 < 16:
            chk = check_ops((k + 1) % 3)
            for i, m in enumerate(ms):
                p(m)
                if i == 11: p.wait_vm([('z', k + 1)])
                if i >= 12 and chk: p(chk.pop(0))
            assert not chk
            check_branch((k + 1) % 3)
        else:
            for m in ms: p(m)
    stamp('p2_mfma')
    for u in range(1, 4):
        p(f"""s_xor_b32 {sA}, {sW}, {u}
        s_mul_i32 {sA}, {sA}, {21*1024}
        v_add_u32 v{13+u}, {sA}, {vL16}""")
    for u in range(1, 4):
        for ft in range(7):
            p(f"ds_write_b128 v{13+u}, {vr(ACC+(u*7+ft)*4)} offset:{RED + ((u-1)*7+ft)*1024}")
    p(f"""s_mul_i32 {sA}, {sW}, {21*1024}
    v_add_u32 v17, {sA}, {vL16}
    s_waitcnt lgkmcnt(0)
    s_barrier""")
    for u in range(1, 4):
        for ft in range(7):
            p(f"ds_read_b128 {vr(ACC+(u*7+ft)*4)}, v17 offset:{RED + ((u-1)*7+ft)*1024}")
    p.wait_vm('bsp')
    p(f"v_lshlrev_b32 {vBsp}, 16, {vBsp}")
    for i in range(28): p(f"v_add_f32 v{ACC+i}, v{ACC+i}, {vBsp}")
    for u in range(1, 4):
        p(f"s_waitcnt lgkmcnt({7*(3-u)})")
        for i in range(28): p(f"v_add_f32 v{ACC+i}, v{ACC+i}, v{ACC+28*u+i}")
    for i in range(28): p(f"v_mul_f32 v{ACC+i}, v{ACC+i}, v{Z1+i}")
    pack_tiles(ACC, False)
    h_stores(lambda i: PK + 4 * i, 'hst')
    stamp('h_pub')
    p("s_barrier")
    wo_dma(1, WO1)
    flag_wait(WS_FV)
    p(f"""s_and_b32 {sA}, {sRB}, 15
    s_lshl_b32 {sA}, {sA}, 18
    s_lshl_b32 {sB}, {sCB}, 15
    s_add_u32 {sA}, {sA}, {sB}
    s_lshl_b32 {sB}, {sW}, 13
    s_add_u32 {sA}, {sA}, {sB}
    s_add_u32 {sA}, {sA}, {WS_V}""")
    for i in range(8):
        p(f"s_add_u32 {sC}, {sA}, {i*1024}")
        dma(vL16, sWS, sC, f"s_add_u32 m0, {sB}, {VT + i*1024}", 'vt', flags='sc1')
    p(f"""s_lshl_b32 {sA}, {sW}, 5
    s_add_u32 {sF}, {sA}, {sRB}
    s_lshl_b32 {sA}, {sF}, 6
    s_add_u32 {sA}, {sA}, {WS_G}
    v_lshlrev_b32 v14, 2, {vC}""")
    p(f"buffer_load_dword {vG}, v14, {sWS}, {sA} offen sc1", tag='g')
    groups = [(1, 0), (0, 0), (1, 1), (0, 1)]
    for b, (u, part) in enumerate(groups):
        p(f"""s_xor_b32 {sA}, {sW}, {u}
        s_lshl_b32 {sA}, {sA}, 5
        s_add_u32 {sA}, {sA}, {sRB}
        s_mul_i32 {sA}, {sA}, 28
        s_and_b32 {sB}, {sW}, 1
        s_mul_i32 {sB}, {sB}, 14
        s_add_u32 {sA}, {sA}, {sB}
        s_add_u32 {sA}, {sA}, {7*part}
        s_lshl_b32 {sA}, {sA}, 10
        s_add_u32 {sOFF[b]}, {sA}, {WS_H}""")
    FF = 92; A3 = 60; VF = 124
    p(f"""v_lshlrev_b32 v14, 7, {vC}
    v_add_u32 v14, {sF}, v14
    v_cvt_f32_u32 v14, v14
    v_mul_f32 v14, {fh(1.0/2048)}, v14
    v_lshlrev_b32 v15, 2, {vQ}
    v_cvt_f32_u32 v15, v15
    v_mul_f32 v15, v15, v14""")
    for kk in range(8):
        for i in range(4): p(f"v_fmamk_f32 v{16+i}, v14, {fh(float(16*kk+i))}, v15")
        for i in range(4): p(f"v_fract_f32 v{16+i}, v{16+i}")
        for i in range(4): p(f"v_cos_f32 v{20+i}, v{16+i}\nv_sin_f32 v{24+i}, v{16+i}")
        for i in range(4): p(f"v_cvt_pk_bf16_f32 v{FF+4*kk+i}, v{20+i}, v{24+i}")
    p(f"""v_lshrrev_b32 v14, 2, {vC}
    v_and_b32 v15, 1, {vQ}
    v_lshrrev_b32 v24, 3, {vC}
    v_lshl_add_u32 v24, v15, 1, v24
    v_and_b32 v25, 3, {vC}
    v_lshlrev_b32 v25, 3, v25
    s_and_b32 {sA}, {sW}, 1
    s_mul_i32 {sA}, {sA}, 28672
    v_add_u32 v25, {sA}, v25
    v_lshl_add_u32 v26, {vQ}, 2, v14
    v_lshl_add_u32 v26, v26, 7, v25
    v_lshrrev_b32 v27, 1, {vQ}
    v_mul_u32_u24 v27, 112, v27
    v_lshl_add_u32 v27, v15, 2, v27
    v_add_u32 v27, v27, v14
    v_lshl_add_u32 v27, v27, 7, v25
    """)
    for dt in range(4):
        p(f"""v_xor_b32 v14, {dt}, v24
        v_lshl_add_u32 v{16+dt}, v14, 5, v26
        v_lshl_add_u32 v{20+dt}, v14, 5, v27""")
    for i in range(8): p(f"v_add_u32 v{244+i}, {WO0}, v{16+i}") if False else None
    def wo_reads(part, regs):
        for st in range(7):
            for dt in range(4):
                ab = (part * 7 + st) * 16 + 4 * dt
                for h in range(2):
                    if st < 6:
                        row = 112 * (st // 3) + 32 * (st % 3) + 16 * h
                        p(f"ds_read_b64_tr_b16 {ar(ab+2*h,2)}, v{regs+dt} offset:{row*128}")
                    else:
                        row = 96 + 8 * h
                        p(f"ds_read_b64_tr_b16 {ar(ab+2*h,2)}, v{regs+4+dt} offset:{row*128}")
    for i in range(8): p(f"v_add_u32 v{VF+8+i}, {WO0}, v{16+i}")
    p.wait_vm(['vt', 'g'])
    p("s_barrier")
    for b in range(4): frag_loads(b, ('h', b))
    wo_reads(0, VF + 8)
    wo_reads(1, 16)
    stamp('wo_in')
    p(f"v_add_u32 v14, {VT}, {vL16}")
    p("s_waitcnt lgkmcnt(0)")
    for kk in range(8):
        for dt in range(4): p(f"ds_read_b128 {vr(VF+4*dt)}, v14 offset:{dt*8192 + kk*1024}")
        p("s_waitcnt lgkmcnt(0)")
        for dt in range(4):
            c = '0' if kk == 0 else vr(A3+4*dt)
            p(f"v_mfma_f32_16x16x32_bf16 {vr(A3+4*dt)}, {vr(VF+4*dt)}, {vr(FF+4*kk)}, {c}")
    for i in range(16): p(f"v_mul_f32 v{A3+i}, v{A3+i}, {vG}")
    for i in range(16): p(f"v_mov_b32 v{A3+16+i}, 0")
    stamp('y_done')
    for b, (u, part) in enumerate(groups):
        p.wait_vm([('h', b)])
        for o in check_ops(b): p(o)
        check_branch(b)
        for st in range(7):
            for dt in range(4):
                acc = A3 + 16 * u + 4 * dt
                p(f"v_mfma_f32_16x16x32_bf16 {vr(acc)}, {ar((part*7+st)*16+4*dt)}, {vr(BUF[b]+4*st)}, {vr(acc)}")
        if b == 2:
            p(f"""s_xor_b32 {sA}, {sW}, 1
            s_lshl_b32 {sA}, {sA}, 12
            s_add_u32 {sA}, {sA}, {RED3}
            v_add_u32 v14, {sA}, {vL16}""")
            for dt in range(4): p(f"ds_write_b128 v14, {vr(A3+16+4*dt)} offset:{dt*1024}")
    stamp('p3_mfma')
    p(f"""s_lshl_b32 {sA}, {sW}, 12
    s_add_u32 {sA}, {sA}, {RED3}
    v_add_u32 v14, {sA}, {vL16}
    s_waitcnt lgkmcnt(0)
    s_barrier""")
    for dt in range(4): p(f"ds_read_b128 {vr(A3+16+4*dt)}, v14 offset:{dt*1024}")
    p(f"""v_lshlrev_b32 v15, 17, {vC}
    v_lshl_add_u32 v15, {vQ}, 3, v15
    s_lshl_b32 {sA}, {sF}, 10
    s_lshl_b32 {sB}, {sCB}, 7
    s_add_u32 {sA}, {sA}, {sB}
    s_waitcnt lgkmcnt(0)""")
    for i in range(16): p(f"v_add_f32 v{A3+i}, v{A3+i}, v{A3+16+i}")
    for dt in range(4):
        p(f"v_cvt_pk_bf16_f32 v{16+2*dt}, v{A3+4*dt}, v{A3+4*dt+1}")
        p(f"v_cvt_pk_bf16_f32 v{17+2*dt}, v{A3+4*dt+2}, v{A3+4*dt+3}")
    for dt in range(4):
        p(f"buffer_store_dwordx2 {vr(16+2*dt,2)}, v15, {sOUT}, {sA} offen offset:{32*dt}")
    stamp('end')
    p("L_end:\ns_endpgm")
    for b in range(4):
        p(f"""L_retry{b}:
        s_mov_b32 {sCNT}, 0
        L_retry{b}_l:""")
        frag_loads(b, 'untracked')
        p("s_waitcnt vmcnt(0)")
        for o in check_ops(b): p(o)
        p(f"""s_add_u32 {sCNT}, {sCNT}, 1
        s_cmp_ge_u32 {sCNT}, {SPIN_LIMIT}
        s_cbranch_scc1 L_retry{b}_r
        s_cbranch_vccnz L_retry{b}_l
        L_retry{b}_r:
        s_setpc_b64 {sRET}""")
    p.raw(f""".section .rodata,"a"
.p2align 6
.amdhsa_kernel {NAME}
  .amdhsa_next_free_vgpr 512
  .amdhsa_next_free_sgpr 102
  .amdhsa_accum_offset 256
  .amdhsa_group_segment_fixed_size 0
  .amdhsa_kernarg_size 112
  .amdhsa_user_sgpr_count 2
  .amdhsa_user_sgpr_kernarg_segment_ptr 1
  .amdhsa_system_sgpr_workgroup_id_x 1
.end_amdhsa_kernel""")
    return p.text()

if __name__ == '__main__':
    stamps = '--stamps' in sys.argv
    out = [a for a in sys.argv[1:] if not a.startswith('--')]
    txt = gen(stamps)
    open(out[0], 'w').write(txt)
    if stamps: open(out[0] + '.names', 'w').write('\n'.join(STAMPN))
```

```python
import re

TRANS = ('v_exp_f32', 'v_log_f32', 'v_rcp_f32', 'v_rsq_f32', 'v_sqrt_f32', 'v_sin_f32', 'v_cos_f32')

def parse_regs(op):
    op = op.strip()
    op = op.lstrip('-')
    if op.startswith('abs(') or op.startswith('|'):
        op = op.strip('|').replace('abs(', '').rstrip(')')
    m = re.fullmatch(r'([vas])(\d+)', op)
    if m: return {(m.group(1), int(m.group(2)))}
    m = re.fullmatch(r'([vas])\[(\d+):(\d+)\]', op)
    if m: return {(m.group(1), i) for i in range(int(m.group(2)), int(m.group(3)) + 1)}
    if op == 'vcc': return {('vcc', 0)}
    if op in ('vcc_lo', 'vcc_hi'): return {('vcc', 0)}
    if op == 'exec': return {('exec', 0)}
    if op == 'm0': return {('m0', 0)}
    return set()

class Ins:
    def __init__(self, text):
        self.text = text
        t = text.split(';')[0].strip()
        parts = t.split(None, 1)
        self.mn = parts[0]
        rest = parts[1] if len(parts) > 1 else ''
        ops, depth, cur = [], 0, ''
        for ch in rest:
            if ch == '[': depth += 1
            if ch == ']': depth -= 1
            if ch == ',' and depth == 0:
                ops.append(cur); cur = ''
            else: cur += ch
        if cur.strip(): ops.append(cur)
        self.mods = ''
        if ops:
            last = ops[-1].strip().split(None, 1)
            ops[-1] = last[0]
            self.mods = last[1] if len(last) > 1 else ''
        self.ops = [o.strip() for o in ops]
        mn = self.mn
        R = [parse_regs(o) for o in self.ops]
        un = lambda l: set().union(*l) if l else set()
        self.kind = 'other'
        self.w = set(); self.r = set()
        self.states = 1
        self.trans = False; self.dpp = False; self.perm = False; self.rdlane = False
        self.wide_store = False; self.ldsdma = False
        if mn == 's_nop':
            self.kind = 'nop'; self.states = int(self.ops[0], 0) + 1
        elif mn.startswith('v_mfma'):
            self.kind = 'mfma'; self.w = R[0]; self.A = R[1]; self.B = R[2]; self.C = R[3]
            self.r = R[1] | R[2] | R[3]
            self.passes = 8 if '32x32' in mn else 4
        elif mn.startswith('v_'):
            self.kind = 'valu'
            self.trans = any(mn.startswith(x) for x in TRANS)
            self.dpp = ('_dpp' in mn) or ('row_' in self.mods) or ('quad_perm' in self.mods)
            if mn.startswith('v_permlane'):
                self.perm = True; self.w = R[0] | R[1]; self.r = R[0] | R[1]
            elif mn.startswith(('v_add_co', 'v_sub_co', 'v_addc_co', 'v_subb_co', 'v_subrev_co')):
                self.w = R[0] | R[1]; self.r = un(R[2:])
            else:
                self.w = R[0]; self.r = un(R[1:])
                if mn.startswith(('v_fmac', 'v_pk_fmac', 'v_dot2c', 'v_writelane')) or self.dpp: self.r |= R[0]
            if mn.startswith(('v_readfirstlane', 'v_readlane')): self.rdlane = True
        elif mn.startswith('ds_'):
            self.kind = 'ds'
            if mn.startswith(('ds_read', 'ds_bpermute', 'ds_permute', 'ds_swizzle')):
                self.w = R[0]; self.r = un(R[1:])
            else:
                self.r = un(R)
        elif mn.startswith(('buffer_', 'global_')):
            self.kind = 'vmem'
            mods = ' ' + self.mods + ' '
            if ' lds ' in mods or '_lds_' in mn:
                self.ldsdma = True; self.r = un(R) | {('m0', 0)}
            elif '_load' in mn:
                self.w = R[0]; self.r = un(R[1:])
            else:
                self.r = un(R)
                if 'x4' in mn or 'x3' in mn:
                    self.wide_store = True
                    self.data = R[0] if mn.startswith('buffer_') else R[1]
        elif mn.startswith('s_'):
            self.kind = 'salu'
            if mn.startswith(('s_cmp', 's_cbranch', 's_branch', 's_waitcnt', 's_barrier', 's_sleep', 's_setprio', 's_endpgm', 's_setpc')):
                self.r = un(R)
            else:
                self.w = R[0] if R else set(); self.r = un(R[1:])
                if 'saveexec' in mn: self.w |= {('exec', 0)}

def vec(s): return {x for x in s if x[0] in 'va' and x[0] != 'vcc'}
def sca(s): return {x for x in s if x[0] in ('s', 'vcc')}

def need(p, c):
    n = 0
    if p.kind == 'valu':
        pw = vec(p.w); ps = sca(p.w)
        if c.kind == 'mfma' and pw & c.r: n = max(n, 2)
        if c.kind == 'valu':
            if p.trans and not c.trans and pw & c.r: n = max(n, 1)
            if p.trans and c.trans and pw & c.r: n = max(n, 1)
            if (c.dpp or c.perm) and pw & c.r: n = max(n, 2)
            if c.rdlane and pw & c.r: n = max(n, 1)
            if ps & c.r: n = max(n, 4 if c.rdlane else 2)
        if c.kind == 'vmem' and ps & c.r: n = max(n, 5)
        if c.kind == 'salu' and ps & c.r: n = max(n, 1)
    if p.kind == 'mfma':
        big = {4: 8, 8: 12}[p.passes]
        if c.kind == 'mfma':
            if p.w & (c.A | c.B): n = max(n, big)
            if p.w & c.C and not (p.w == c.C and p.passes == c.passes): n = max(n, big - 2)
            if p.w & c.w and not (p.w == c.C and p.passes == c.passes): n = max(n, big - 2)
        elif c.kind in ('valu', 'ds', 'vmem'):
            if p.w & (c.r | c.w): n = max(n, big)
        if c.kind == 'valu' and p.C & c.w: n = max(n, {4: 3, 8: 7}[p.passes])
    if p.kind == 'salu' and ('m0', 0) in p.w and c.ldsdma: n = max(n, 1)
    if p.kind == 'vmem' and p.wide_store and p.data & c.w:
        n = max(n, 2 if c.kind == 'valu' else 1)
    return n

def cost(mn):
    if mn.startswith('v_mfma'): return 5
    if mn.startswith(TRANS): return 9
    if mn.startswith('v_pk'): return 6
    if mn.startswith('v_'): return 5
    if mn.startswith('ds_read_b128'): return 16
    if mn.startswith('ds_read'): return 10
    if mn.startswith('ds_write_b128'): return 50
    if mn.startswith('ds_write'): return 16
    if mn.startswith(('buffer_', 'global_')): return 10
    if mn == 's_barrier': return 30
    return 4

class Prog:
    def __init__(self):
        self.items = []
        self.vm = []
        self.lg = []
        self.lg_done = 0
        self.now = 0.0
    def __call__(self, s, tag=None):
        for l in s.strip('\n').split('\n'):
            l = l.strip()
            if not l or l.startswith(';'): continue
            if l.endswith(':'):
                self.items.append(('l', l[:-1])); continue
            self.items.append(('i', l))
            mn = l.split()[0]
            if tag == 'untracked': continue
            if mn.startswith(('buffer_', 'global_')): self.vm.append(tag)
            if mn.startswith('ds_'): self.lg.append(tag)
            if mn == 's_waitcnt':
                m = re.search(r'lgkmcnt\((\d+)\)', l)
                if m: self.lg_done = max(self.lg_done, len(self.lg) - int(m.group(1)))
            self.now += cost(mn)
    def raw(self, s): self.items.append(('raw', s))
    def comment(self, s): self.items.append(('raw', '    ; ' + s))
    def vm_after(self, tags):
        if not isinstance(tags, (list, tuple, set)): tags = [tags]
        idx = max(i for i, t in enumerate(self.vm) if t in tags)
        return len(self.vm) - 1 - idx
    def wait_vm(self, tags, extra=''):
        n = min(self.vm_after(tags), 63)
        self(f"s_waitcnt vmcnt({n}) {extra}".strip())
    def wait_lg(self, tag):
        idx = max(i for i, t in enumerate(self.lg) if t == tag)
        if idx < self.lg_done: return
        self(f"s_waitcnt lgkmcnt({min(len(self.lg) - 1 - idx, 15)})")
    def lg_complete(self, tag):
        idx = max(i for i, t in enumerate(self.lg) if t == tag)
        return idx < self.lg_done
    def text(self):
        out = []; hist = []; pos = 0; nops = 0
        for kind, t in self.items:
            if kind == 'raw': out.append(t); continue
            if kind == 'l': out.append(t + ':'); continue
            c = Ins(t)
            req = 0
            for (pp, p) in hist:
                d = pos - pp
                nd = need(p, c)
                if nd > d: req = max(req, nd - d)
            while req > 0:
                k = min(req, 16)
                out.append(f"    s_nop {k-1}"); pos += k; req -= k; nops += 1
            out.append('    ' + t)
            pos += c.states
            hist.append((pos, c))
            hist = [(pp, p) for (pp, p) in hist if pos - pp < 24]
        self.nops = nops
        return '\n'.join(out) + '\n'
```

```python
import sys, math, struct
from prog import Prog

NAME = 'gated_mix__spectral_fnet__mixer_gmlp__prompt_kernel'

def f2u(x): return struct.unpack('<I', struct.pack('<f', x))[0]
def fh(x): return f"0x{f2u(x):08x}"

WS_Z2N = 0
WS_H = 0x400000
WS_V = 0x800000
VT1 = 17 * 8192
WS_ST = 0xC00000
WS_G = 0xC80000
WS_FC = 0xC90000
WS_FV = 0xCA0000
WS_STAMP = 0xD00000
WS_SIZE = 0x1000000
SL = 16 * 1040 + 16
NSL = 5
RING = 4 * SL
HB = 8 * 1040
GATE = 163840 - 4096
RED = 0
WO0 = 106496
WO1 = 0
RED3 = 90112
LDS_TOTAL = 163840
SPIN_LIMIT = 200000

sX, sHRE, sHIM, sWIN, sWSP, sWOUT, sOUT, sWS, sDBG, sBSP, sGATE = [f"s[{8+4*i}:{11+4*i}]" for i in range(11)]
SRD = dict(X=8, HRE=12, HIM=16, WIN=20, WSP=24, WOUT=28, OUT=32, WS=36, DBG=40, BSP=44, GATE=48)
KOFF = dict(X=0, WIN=48, HRE=24, HIM=32, WS=104, DBG=96, WSP=56, WOUT=72, OUT=88, BSP=64, GATE=80)
sRB, sCB, sW, sOM, sT0, sT1, sROT2, sW1K = 's52', 's53', 's54', 's55', 's56', 's57', 's58', 's59'
sM1, sM2, sLT4, sLO32, sC0 = 's[60:61]', 's[62:63]', 's[64:65]', 's[66:67]', 's[68:69]'
sRET = 's[70:71]'
sOFF = ['s72', 's73', 's74', 's75']
sA, sB, sC, sD, sE, sF = 's76', 's77', 's78', 's79', 's80', 's81'
sCNT, sZB, sZST, sHST, sHS1 = 's82', 's83', 's84', 's85', 's86'
sG0, sG1, sG2 = 's87', 's88', 's89'
sKC = [f's{90+i}' for i in range(8)]
sROT = 's3'
sWSB = 's72'
sWSM = ['s73', 's74']
sZF = 's75'

vL16, vL16b, vC, vQ, vBsp, vG = 'v1', 'v2', 'v3', 'v4', 'v5', 'v6'
vG1, vWspRd, vZst = 'v9', 'v11', 'v12'
vVad = ['v7']
vWinSrc = ['v8', 'v9', 'v13', 'v6']
vWspSrc = ['v10', 'v28', 'v29', 'v2']
vWoSrc = ['v26', 'v27', 'v28', 'v29']
vWoRd = ['v7', 'v10', 'v11', 'v12']
sTAU = ['s90', 's91']
sHO = ['s92', 's93']
sVS, sSG = 's94', 's95'
sW4K = 's6'
sWDO = 's7'
vChk = 'v13'
Z1 = 32
ACC = 60
BUF = [172, 200, 228, 144]
Z2 = 60; ACA = 88; PK = 108; COEF = 140; FLG = 164
G2O = 60; CFR = 108
FB = [172, 200, 228]
vWinRd = [f'v{124+i}' for i in range(7)]
vGateRd = 'v131'
vWdRd = 'v132'
vRow = [f'v{136+i}' for i in range(4)]
MEANI = 156
vSt0, vSt1 = 'v160', 'v161'
vTag = 162
vXrd1, vXrd2 = 'v20', 'v21'
FPARK = 0
FA = [128, 192]
XF1, XF2 = 128, 192

def vr(b, n=4): return f"v[{b}:{b+n-1}]"
def ar(b, n=4): return f"a[{b}:{b+n-1}]"
def lines(s): return [l.strip() for l in s.strip('\n').split('\n') if l.strip() and not l.strip().startswith(';')]

def gen(stamps=False, opt=None):
    o = dict(xfl='', wfl='', sfl='', poll_after=11, t_win=100, t_h=105, lat=900, bmax=300, hold_c=5, zf_delay=2, leader=False, z_before_v=False, hold=0, tag_at=3, omask=0, gmul=3, b_wd=True, tw_after=None, tg_after=None, tail_every=12, t_wd=False, t_wo=True, sfl2='', chk=4, tailn=14, w0_after=7, code_pf=True, lead=3,
             h_issue='late', outfl='', w0_read=9, code_size=1024,
             rate_z2=[8]*8, gelu_every=14, post_stats=8, rate_z1=8, z2_extra=8, pre_x=0, fg_every=6)
    o.update(opt or {})
    p = Prog()
    global STAMPN
    STAMPN = []
    def stamp(name):
        if not stamps: return
        i = len(STAMPN)
        p(f"""s_memrealtime s[98:99]
        s_memtime s[100:101]
        s_waitcnt lgkmcnt(0)
        v_writelane_b32 v30, s98, {i}
        v_writelane_b32 v31, s100, {i}""", tag='untracked')
        if o.get('verbose'): print('model', name, int(p.now), 'pipe', int(sch['pipe']), 'h issued', 8 - (len(Q['h']) + 7) // 8, 'read', len(done_h), 'c left', len(Q['c']) // 4)
        STAMPN.append(name)

    ring = [f'c{n}' for n in range(20)] + ['vasm']
    pos = {it: i for i, it in enumerate(ring)}
    freed = set(); pend = set()
    bgq = []
    def legal(it):
        if it in pos: return pos[it] < NSL or ring[pos[it] - NSL] in freed
        if isinstance(it, str) and it[0] == 'h':
            j = int(it[1:])
            return ('x' if j < 2 else f'h{j-2}') in freed
        return True
    gate = {'n': 10**9}
    def pump(n=1):
        while n > 0 and bgq and legal(bgq[0][0]) and gate['n'] > 0:
            bgq.pop(0)[1](); n -= 1; gate['n'] -= 1
    def set_gate(it, extra):
        idx = [i for i, q in enumerate(bgq) if q[0] == it]
        gate['n'] = (idx[-1] + 1 if idx else 0) + extra
    def force(it):
        while any(q[0] == it for q in bgq):
            assert legal(bgq[0][0]), (it, bgq[0][0])
            bgq.pop(0)[1](); gate['n'] -= 1
    def barrier():
        p("s_barrier")
        freed.update(pend); pend.clear()
    def inter(ins, every):
        for i, l in enumerate(ins):
            p(l)
            if every and i % every == every - 1: pump(1)
    def slot_base(it): return RING + (pos[it] % NSL) * SL

    def dma(voff, srd, soff, tag, imm=0, flags=''):
        s = f"buffer_load_dwordx4 {voff}, {srd}, {soff} offen"
        if imm: s += f" offset:{imm}"
        if flags: s += ' ' + flags
        p(s + ' lds', tag=tag)

    def q_x():
        for g in range(4):
            for i in range(4):
                def f(g=g, i=i):
                    if i == 0:
                        p(f"""s_xor_b32 {sG1}, {sD}, {g}
                        s_lshl_b32 {sG2}, {sG1}, 17
                        s_add_u32 {sG2}, {sG2}, {sE}
                        s_mul_i32 {sG1}, {sG1}, {4*1040}
                        s_add_u32 m0, {sG1}, {sG0}""")
                    dma(vRow[i], sX, sG2, 'x', imm=i*1040, flags=o['xfl'])
                bgq.append(('x', f))
    def q_chunk(n):
        it = f'c{n}'
        for jj in range(4):
            def f(jj=jj):
                if n < 16:
                    if jj == 0:
                        if n == 8:
                            for r in vWinSrc: p(f"v_subrev_u32 {r}, 1792, {r}")
                        p(f"s_add_u32 m0, {sW4K}, {slot_base(it)}")
                    dma(vWinSrc[jj], sWIN, sKC[n & 7], it, imm=jj*1024, flags=o['wfl'])
                else:
                    x = n - 16
                    if jj == 0:
                        p(f"""s_add_u32 {sG0}, {sWDO}, {(x & 1)*16384}
                        s_mul_i32 {sG1}, {sW}, {4*1040}
                        s_add_u32 m0, {sG1}, {slot_base(it)}""")
                    dma(vRow[jj], sHRE if x < 2 else sHIM, sG0, it, imm=jj*1040, flags=o['wfl'])
            bgq.append((it, f))
    def q_wsp(j, tag=None):
        it = f'h{j}'; u, hh = j >> 1, j & 1
        for i in range(8):
            def f(i=i):
                if i == 0:
                    p(f"s_xor_b32 {sG2}, {sWSB}, {(u << 12) + (hh << 7)}")
                    p(f"s_add_u32 m0, {sWSM[0]}, {hh*HB}")
                if i == 4:
                    p(f"s_xor_b32 {sG2}, {sG2}, {1 << 22}")
                    p(f"s_add_u32 m0, {sWSM[1]}, {hh*HB}")
                dma(vWspSrc[i % 4], sWSP, sG2, tag or it, imm=(i % 4) * 1040, flags=o['sfl'])
            bgq.append((it, f))
    Q = {}
    q_x(); Q['x'] = bgq[:]; bgq.clear()
    for n in range(20): q_chunk(n)
    Q['c'] = bgq[:]; bgq.clear()
    for j in range(8): q_wsp(j)
    Q['h'] = bgq[:]; bgq.clear()
    Q['z'] = []
    sch = dict(pipe=0.0, cur=None, cnt=0, need=0, hmax=4, hq=[], hpend=[], hold=False, valu=False)
    landed = {}
    done_h = []
    def issue(qn):
        it, f = Q[qn].pop(0)
        assert legal(it), it
        f()
        t = o['t_win'] if (qn == 'c' and int(it[1:]) < 16) else (o['t_h'] if qn == 'h' else 72)
        sch['pipe'] = max(sch['pipe'], p.now) + t
        landed[it] = sch['pipe'] + o['lat']
        sch['cnt'] = (sch['cnt'] + 1) % 4 if qn != 'z' else 0
        sch['cur'] = qn if sch['cnt'] else None
    def sforce(qn, it):
        while any(q[0] == it for q in Q[qn]):
            issue(sch['cur'] or qn)
    def swait(it, extra=''):
        p.wait_vm([it], extra)
        p.now = max(p.now, landed.get(it, 0))
    def pick():
        if sch['cur']: return sch['cur']
        cok = Q['c'] and legal(Q['c'][0][0])
        hok = Q['h'] and legal(Q['h'][0][0]) and not sch['hold']
        if cok and int(Q['c'][0][0][1:]) - sch['need'] < o['lead']: return 'c'
        if hok: return 'h'
        if cok and not (sch['hold'] and int(Q['c'][0][0][1:]) >= 8 + o['hold_c']): return 'c'
        if Q['z'] and not Q['h']: return 'z'
        return None
    def tick():
        for j in sch['hpend'][:]:
            if p.lg_complete(f'h{j}'): freed.add(f'h{j}'); sch['hpend'].remove(j)
            elif sch['valu'] and p.now >= sch['ht'] + 150:
                p.wait_lg(f'h{j}'); freed.add(f'h{j}'); sch['hpend'].remove(j)
        if sch['hq']:
            l, j = sch['hq'].pop(0)
            p(l, tag=f'h{j}')
            if not sch['hq']: sch['hpend'].append(j); sch['ht'] = p.now
        else:
            j = len(done_h)
            if j < sch['hmax'] and not any(q[0] == f'h{j}' for q in Q['h']) and p.now >= landed[f'h{j}']:
                start_h(j)
        if sch['pipe'] - p.now < o['bmax']:
            qn = pick()
            if qn: issue(qn)
    def start_h(j):
        done_h.append(j)
        sforce('h', f'h{j}')
        swait(f'h{j}')
        for k in range(8):
            b = 32 * j + 4 * k
            sch['hq'].append((f"ds_read_b64 {ar(b,2)}, {vWspRd} offset:{(j&1)*HB + 16*k}", j))
            sch['hq'].append((f"ds_read_b64 {ar(b+2,2)}, {vWspRd} offset:{(j&1)*HB + 16*k+256}", j))
    def fg(ins):
        sch['valu'] = True
        for l in ins:
            p(l); tick()
        sch['valu'] = False
    def drain_h(upto):
        sch['valu'] = True
        while sch['hq'] or sch['hpend'] or len(done_h) < upto:
            if not sch['hq'] and not sch['hpend'] and len(done_h) < upto:
                start_h(len(done_h))
            if not sch['hq']: p.now += 50
            tick()
        sch['valu'] = False

    p.raw(f"; @launch grid=(256,1,1) block=(256,1,1) lds={LDS_TOTAL}")
    p.raw('.amdgcn_target "amdgcn-amd-amdhsa--gfx950"')
    p.raw(f".text\n.globl {NAME}\n.p2align 8\n.type {NAME},@function\n{NAME}:")
    p("s_cmp_ge_u32 s2, 256\ns_cbranch_scc1 L_end")
    for kname, off in KOFF.items():
        p(f"s_load_dwordx2 s[{SRD[kname]}:{SRD[kname]+1}], s[0:1], {off}")
    p(f"""
    s_memrealtime s[56:57]
    s_getpc_b64 s[4:5]
    v_lshrrev_b32 v14, 6, v0
    v_and_b32 v0, 63, v0
    v_readfirstlane_b32 {sW}, v14
    s_and_b32 {sA}, s2, 7
    s_lshr_b32 {sB}, s2, 3
    s_lshr_b32 {sRB}, {sA}, 1
    s_lshl_b32 {sRB}, {sRB}, 3
    s_lshr_b32 {sC}, {sB}, 2
    s_add_u32 {sRB}, {sRB}, {sC}
    s_and_b32 {sD}, {sA}, 1
    s_lshl_b32 {sCB}, {sD}, 2
    s_and_b32 {sC}, {sB}, 3
    s_add_u32 {sCB}, {sCB}, {sC}
    s_and_b32 {sOM}, {sC}, {o['omask']}
    s_xor_b32 {sOM}, {sOM}, {sW}
    s_and_b32 {sROT}, {sRB}, 7
    s_lshl_b32 {sW4K}, {sW}, 12
    s_lshr_b32 {sROT2}, {sRB}, 1
    s_and_b32 {sROT2}, {sROT2}, {12 if o['leader'] else 15}
    s_lshl_b32 {sW1K}, {sW}, 10
    s_lshl_b32 {sE}, {sB}, 2
    s_add_u32 {sE}, {sE}, {sW}
    v_lshlrev_b32 {vL16}, 4, v0
    v_and_b32 {vC}, 15, v0
    v_lshrrev_b32 {vQ}, 4, v0
    s_lshl_b32 {sA}, {sROT}, 5
    v_xor_b32 v14, {sA}, {vL16}
    v_add_u32 {vRow[0]}, 64, v14
    v_add_u32 {vRow[1]}, 48, v14
    v_add_u32 {vRow[2]}, 32, v14
    v_add_u32 {vRow[3]}, 16, v14
    """)
    if o['code_pf']:
        p(f"""s_cmp_ge_u32 {sE}, {(o['code_size'] + 8191) // 8192}
        s_cbranch_scc1 L_nocpf
        s_lshl_b32 {sA}, {sE}, 13
        v_lshl_add_u32 v15, v0, 7, {sA}
        v_min_u32 v15, {o['code_size'] - 256}, v15""")
        p("global_load_dword v27, v15, s[4:5]", tag='untracked')
        p("L_nocpf:")
    sizes = dict(X=2048*1024+64, HRE=512*1024+64, HIM=512*1024+64, WIN=512*3584, WSP=2048*4096, WOUT=896*1024,
                 OUT=2048*1024, WS=WS_SIZE, DBG=256, BSP=4096, GATE=1024+64)
    for kname, b in SRD.items():
        p(f"s_mov_b32 s{b+2}, {sizes[kname]}\ns_mov_b32 s{b+3}, 0x20000")
    p(f"""s_and_b32 {sD}, {sCB}, 3
    s_lshl_b32 {sE}, {sW}, 19
    s_lshl_b32 {sA}, {sRB}, 12
    s_add_u32 {sE}, {sE}, {sA}
    s_mul_i32 {sG0}, {sW}, {SL}
    s_waitcnt lgkmcnt(0)
    s_sub_u32 s8, s8, 64
    s_subb_u32 s9, s9, 0""")
    for _ in range(4): issue('x')
    p(f"""
    s_or_b32 {sT0}, {sT0}, 1
    s_or_b32 {sA}, s2, {sW}
    s_cmp_lg_u32 {sA}, 0
    s_cbranch_scc1 L_notag
    v_mov_b32 v18, {sT0}
    v_mov_b32 v19, {sT1}
    s_mov_b64 exec, 1
    """)
    p(f"buffer_store_dwordx2 v[18:19], off, {sDBG}, 0 sc1", tag='untracked')
    p("s_mov_b64 exec, -1\nL_notag:")
    stamp('start')
    for _ in range(4): issue('x')
    p(f"""
    s_lshl_b32 {sA}, {sW}, 7
    v_add_u32 v15, {sA}, {vQ}
    v_mul_u32_u24 v16, 3584, v15
    s_mul_i32 {sA}, {sCB}, 224
    s_and_b32 {sB}, {sCB}, 1
    s_lshl_b32 {sC}, {sB}, 5
    s_sub_u32 {sA}, {sA}, {sC}
    s_add_u32 {sA}, {sA}, 1792
    s_and_b32 {sB}, {sW}, 1
    s_lshl_b32 {sB}, {sB}, 3
    v_lshl_add_u32 v14, {vQ}, 1, {sB}
    v_xor_b32 v14, v14, {vC}
    v_lshlrev_b32 v14, 4, v14
    v_add3_u32 {vWinSrc[0]}, v14, v16, {sA}
    v_add_u32 {vWinSrc[1]}, {4*3584-1024}, {vWinSrc[0]}
    v_add_u32 {vWinSrc[2]}, {4*3584-1024}, {vWinSrc[1]}
    v_add_u32 {vWinSrc[3]}, {4*3584-1024}, {vWinSrc[2]}
    """)
    for n in range(8):
        p(f"s_xor_b32 {sA}, {sROT}, {n}\ns_mul_i32 {sKC[n]}, {sA}, {16*3584}")
    for b in (12, 16, 48): p(f"s_sub_u32 s{b}, s{b}, 64\ns_subb_u32 s{b+1}, s{b+1}, 0")
    setup = lines(f"""
    v_lshrrev_b32 v14, 1, {vQ}
    v_lshlrev_b32 v14, 10, v14
    v_and_b32 v15, 1, {vQ}
    v_lshl_add_u32 v14, v15, 9, v14
    v_lshl_add_u32 v14, {vC}, 4, v14
    s_and_b32 {sA}, {sRB}, 1
    s_lshl_b32 {sA}, {sA}, 8
    v_add_u32 {vZst}, {sA}, v14
    s_lshl_b32 {sA}, {sCB}, 2
    s_add_u32 {sA}, {sA}, {sW}
    s_mul_i32 {sZB}, {sA}, {16*7168}
    s_lshl_b32 {sZF}, {sA}, 8
    s_add_u32 {sZF}, {sZF}, {WS_FC}
    s_lshr_b32 {sA}, {sRB}, 1
    s_mul_i32 {sA}, {sA}, 7168
    s_add_u32 {sZST}, {sZB}, {sA}
    s_lshl_b32 {sA}, {sRB}, 2
    s_add_u32 {sA}, {sA}, {sOM}
    s_mul_i32 {sA}, {sA}, 28
    s_lshr_b32 {sB}, {sCB}, 1
    s_mul_i32 {sB}, {sB}, 7
    s_add_u32 {sA}, {sA}, {sB}
    s_lshl_b32 {sA}, {sA}, 10
    s_add_u32 {sA}, {sA}, {WS_H}
    s_and_b32 {sB}, {sCB}, 1
    s_mul_i32 {sC}, {sB}, 3072
    s_add_u32 {sHST}, {sA}, {sC}
    s_lshl_b32 {sC}, {sB}, 9
    s_add_u32 {sHS1}, {sA}, {sC}
    s_add_u32 {sHS1}, {sHS1}, 6144
    s_mov_b32 s66, -1
    s_mov_b32 s67, 0
    v_mov_b32 v22, -1
    v_mov_b32 v23, -1
    v_mov_b32 v24, -1
    v_mov_b32 v25, -1
    """)
    for l in setup: p(l)

    def z2n_stores(base, tag):
        p(f"buffer_store_dwordx4 {vr(base(0))}, {vZst}, {sWS}, {sZST} offen sc1", tag=tag)
        p(f"buffer_store_dwordx4 {vr(base(1))}, {vZst}, {sWS}, {sZST} offen offset:2048 sc1", tag=tag)
        p(f"s_add_u32 {sA}, {sZST}, 4096")
        p(f"buffer_store_dwordx4 {vr(base(2))}, {vZst}, {sWS}, {sA} offen sc1", tag=tag)
        p(f"s_mov_b64 exec, {sLO32}")
        p(f"buffer_store_dwordx4 {vr(base(3))}, {vZst}, {sWS}, {sA} offen offset:2048 sc1", tag=tag)
        p("s_mov_b64 exec, -1")
    def h_stores(base, tag):
        for i in range(3):
            p(f"buffer_store_dwordx4 {vr(base(i))}, {vL16}, {sWS}, {sHST} offen offset:{1024*i} sc1", tag=tag)
        p(f"s_mov_b64 exec, {sLO32}")
        p(f"buffer_store_dwordx4 {vr(base(3))}, {vL16}, {sWS}, {sHS1} offen sc1", tag=tag)
        p("s_mov_b64 exec, -1")

    setup2 = lines(f"""
    v_lshrrev_b32 v14, 2, {vC}
    v_lshl_add_u32 v15, {vQ}, 4, v14
    v_lshlrev_b32 v15, 8, v15
    v_and_b32 v16, 3, {vC}
    v_lshl_add_u32 v15, v16, 3, v15
    v_and_b32 v16, 1, {vQ}
    v_lshl_add_u32 v16, v16, 2, v14
    s_and_b32 {sB}, {sCB}, 1
    """)
    for ft in range(7):
        setup2 += lines(f"""s_add_u32 {sA}, {sB}, {ft}
        v_xor_b32 v17, {sA}, v16
        v_lshl_add_u32 {vWinRd[ft]}, v17, 5, v15""")
    setup2 += lines(f"""
    v_mul_u32_u24 v14, 1040, {vC}
    v_lshl_add_u32 {vWdRd}, {vQ}, 8, v14
    s_mul_i32 {sA}, {sW}, {SL}
    v_add_u32 {vXrd1}, {sA}, {vWdRd}
    v_mul_u32_u24 v14, {4*1040}, {vC}
    v_lshrrev_b32 v15, 2, {vC}
    v_lshl_add_u32 v14, v15, 4, v14
    v_lshl_add_u32 v14, {vQ}, 8, v14
    s_mul_i32 {sA}, {sOM}, 1040
    v_add_u32 {vXrd2}, {sA}, v14
    """)
    for l in setup2: p(l)
    setup3 = lines(f"""
    s_lshl_b32 {sWDO}, {sCB}, 15
    s_add_u32 {sWDO}, {sWDO}, {sW4K}
    s_lshl_b32 {sA}, {sW}, 2
    v_add_u32 v15, {sA}, {vQ}
    v_mul_u32_u24 v15, {VT1}, v15
    v_lshl_add_u32 {vVad[0]}, {vC}, 4, v15""")
    setup3 += lines(f"""
    s_add_u32 {sA}, {sW1K}, {GATE}
    v_lshl_add_u32 {vGateRd}, {vQ}, 8, {sA}
    v_lshrrev_b32 v15, 5, v0
    v_bfe_u32 v16, v0, 3, 2
    v_xor_b32 v16, v16, v15
    v_lshlrev_b32 v16, 8, v16
    v_lshl_add_u32 v16, v15, 19, v16
    s_and_b32 {sA}, {sROT2}, 7
    v_and_b32 v14, 7, v0
    v_xor_b32 v14, {sA}, v14
    v_lshl_add_u32 v14, v14, 4, v16
    v_add_u32 {vWspSrc[0]}, {sW1K}, v14
    v_add_u32 {vWspSrc[1]}, {2*524288-1040}, {vWspSrc[0]}
    v_add_u32 {vWspSrc[2]}, {2*524288-1040}, {vWspSrc[1]}
    v_add_u32 {vWspSrc[3]}, {2*524288-1040}, {vWspSrc[2]}
    s_lshl_b32 {sA}, {sRB}, 2
    s_add_u32 {sA}, {sA}, {sOM}
    s_lshl_b32 {sWSB}, {sA}, 12
    s_lshr_b32 {sA}, {sROT2}, 3
    s_lshl_b32 {sA}, {sA}, 7
    s_add_u32 {sWSB}, {sWSB}, {sA}
    s_and_b32 {sA}, {sCB}, 1
    s_lshl_b32 {sB}, {sA}, 22
    s_add_u32 {sWSB}, {sWSB}, {sB}
    s_mul_i32 {sB}, {sA}, {4*1040}
    s_mul_i32 {sC}, {sW}, {SL}
    s_add_u32 {sWSM[0]}, {sC}, {sB}
    s_sub_u32 {sWSM[1]}, {sC}, {sB}
    s_add_u32 {sWSM[1]}, {sWSM[1]}, {4*1040}
    v_lshrrev_b32 v14, 1, {vC}
    v_mul_u32_u24 v14, 1040, v14
    v_and_b32 v15, 1, {vC}
    v_lshl_add_u32 v14, v15, 9, v14
    v_lshrrev_b32 v16, 1, {vQ}
    v_xor_b32 v16, v16, v15
    v_lshl_add_u32 v14, v16, 7, v14
    v_and_b32 v15, 1, {vQ}
    v_lshl_add_u32 v14, v15, 3, v14
    v_add_u32 {vWspRd}, {sC}, v14
    v_and_b32 v14, 1, {vC}
    v_cmp_ne_u32 {sM1}, 0, v14
    v_and_b32 v14, 2, {vC}
    v_cmp_ne_u32 {sM2}, 0, v14
    v_cmp_gt_u32 {sLT4}, 4, {vC}
    v_cmp_eq_u32 {sC0}, 0, {vC}
    v_and_b32 v18, 3, {vC}
    v_lshl_add_u32 v18, {vQ}, 2, v18
    v_lshlrev_b32 {vSt0}, 4, v18
    s_lshl_b32 {sA}, {sRB}, 13
    s_lshl_b32 {sB}, {sW}, 8
    s_add_u32 {sF}, {sA}, {sB}
    s_add_u32 {sF}, {sF}, {WS_ST}
    """)
    coefc = [f"v_lshlrev_b32 v14, 2, {vQ}"]
    for k in range(4):
        coefc += lines(f"""v_add_u32 v15, {k}, v14
        v_mul_u32_u24 v15, v15, {vC}
        v_and_b32 v15, 15, v15
        v_cvt_f32_u32 v15, v15
        v_mul_f32 v15, {fh(1.0/16)}, v15
        v_cos_f32 v{PK+k}, v15
        v_sin_f32 v{PK+4+k}, v15""")
    coefc += lines(f"""v_cvt_pk_bf16_f32 v{COEF}, v{PK}, v{PK+1}
    v_cvt_pk_bf16_f32 v{COEF+1}, v{PK+2}, v{PK+3}
    v_cvt_pk_bf16_f32 v{COEF+2}, v{PK+4}, v{PK+5}
    v_cvt_pk_bf16_f32 v{COEF+3}, v{PK+6}, v{PK+7}
    v_xor_b32 v{COEF+4}, 0x80008000, v{COEF+2}
    v_xor_b32 v{COEF+5}, 0x80008000, v{COEF+3}
    v_mov_b32 v{COEF+6}, v{COEF}
    v_mov_b32 v{COEF+7}, v{COEF+1}
    v_mov_b32 v{COEF+8}, v{COEF}
    v_mov_b32 v{COEF+9}, v{COEF+1}
    v_mov_b32 v{COEF+10}, v{COEF+4}
    v_mov_b32 v{COEF+11}, v{COEF+5}
    v_mov_b32 v{COEF+12}, v{COEF+4}
    v_mov_b32 v{COEF+13}, v{COEF+5}
    v_xor_b32 v{COEF+14}, 0x80008000, v{COEF}
    v_xor_b32 v{COEF+15}, 0x80008000, v{COEF+1}""")
    for l in setup3 + coefc: p(l)
    sforce('x', 'x')
    sforce('c', 'c1')
    p(f"s_add_u32 m0, {sW1K}, {GATE}")
    dma(vRow[0], sGATE, '0', 'gate')
    h_stores(lambda i: 22, 'clr')

    p.wait_vm('x')
    p.now = 0.0; sch['pipe'] = 400.0; landed['c0'] = 0; landed['c1'] = 400; sch['hold'] = o['hold']
    barrier()
    stamp('x_in')
    for n in range(16): p(f"ds_read_b128 {ar(XF1+4*n)}, {vXrd1} offset:{16*n}")
    sforce('c', 'c2')
    xset2 = [f"ds_read_b128 {ar(XF2+4*n)}, {vXrd2} offset:{16*n}" for n in range(16)]

    adj = {'win': 0, 'wd': 0}
    def zone(kind, regs, slot):
        want = RING + ((slot - RING) // (3 * SL)) * 3 * SL
        if want != adj[kind]:
            d = want - adj[kind]
            for r in regs:
                p(f"v_add_u32 {r}, {d}, {r}" if d > 0 else f"v_subrev_u32 {r}, {-d}, {r}")
            adj[kind] = want
        return slot - want
    def win_reads(n, ks, fb):
        slot = slot_base(f'c{n}')
        r = []
        if n < 16:
            off = zone('win', vWinRd, slot)
            for ft in range(7):
                for h in range(2):
                    r.append(f"ds_read_b64_tr_b16 {vr(fb+4*ft+2*h,2)}, {vWinRd[ft]} offset:{off + ks*2048 + h*1024}")
        else:
            off = zone('wd', [vWdRd], slot)
            for j in range(4):
                r.append(f"ds_read_b128 {vr(fb+4*j)}, {vWdRd} offset:{off + 16*(4*ks+j)}")
            r.append(f"ds_read_b128 {vr(fb+16)}, {vGateRd} offset:{16*(4*(n-16)+ks)}")
        return r
    def win_mfma(n, ks, fb):
        r = []
        first = ks == 0 and n in (0, 8, 16)
        def c(reg): return '0' if first else vr(reg)
        if n < 8:
            xf = XF1 + 4 * (2 * n + ks)
            for ft in range(7):
                r.append(f"v_mfma_f32_16x16x32_bf16 {vr(Z2+4*ft)}, {ar(xf)}, {vr(fb+4*ft)}, {c(Z2+4*ft)}")
        elif n < 16:
            xf = XF2 + 4 * (2 * (n - 8) + ks)
            for ft in range(7):
                r.append(f"v_mfma_f32_16x16x32_bf16 {vr(Z1+4*ft)}, {vr(fb+4*ft)}, {ar(xf)}, {c(Z1+4*ft)}")
        else:
            acc = ACA + 4 * (n - 16)
            for j in range(4):
                r.append(f"v_mfma_f32_16x16x32_bf16 {vr(acc)}, {ar(XF2+4*(4*ks+j))}, {vr(fb+4*j)}, {'0' if ks == 0 and j == 0 else vr(acc)}")
            r.insert(2, f"v_mfma_f32_16x16x32_bf16 {vr(ACA+16)}, {vr(fb+16)}, {ar(XF2+4*(4*(n-16)+ks))}, {c(ACA+16)}")
        return r

    def sync_chunk(n, hooks):
        it = f'c{n}'
        sforce('c', it)
        if ('pre', n) in hooks: hooks[('pre', n)]()
        swait(it)
        sch['need'] = n + 1
        if n == 18:
            p(f"""s_or_b32 {sA}, {sW}, {sCB}
            s_cbranch_scc1 L_nopatch
            v_mov_b32 v16, 0xbf803f80
            v_mov_b32 v17, v16
            v_mov_b32 v18, v16
            v_mov_b32 v19, v16
            v_add_u32 v15, {slot_base(it)}, {vL16}
            ds_write_b128 v15, v[16:19]
            s_waitcnt lgkmcnt(0)
            L_nopatch:""", tag='untracked')
        barrier()
        if ('post', n) in hooks: hooks[('post', n)]()
    def pipeline(chunks, hooks):
        S = [(n, ks) for n in chunks for ks in range(2 if n < 16 else 4)]
        for j in range(2):
            if S[j][1] == 0: sync_chunk(S[j][0], hooks)
            for l in win_reads(S[j][0], S[j][1], FB[j]): p(l, tag=S[j]); tick()
        for i, (n, ks) in enumerate(S):
            nks = 2 if n < 16 else 4
            p.wait_lg(S[i])
            if ks == nks - 1: pend.add(f'c{n}')
            if not xset2 and 'x' not in freed and p.lg_complete('x2'): pend.add('x')
            rd = []
            if i + 2 < len(S):
                if S[i+2][1] == 0: sync_chunk(S[i+2][0], hooks)
                rd = [(l, S[i+2]) for l in win_reads(S[i+2][0], S[i+2][1], FB[(i + 2) % 3])]
            if xset2 and i < 3:
                k2 = 6 if i < 2 else 4
                rd = [(l, 'x2') for l in xset2[:k2]] + rd; del xset2[:k2]
            ms = win_mfma(n, ks, FB[i % 3])
            per = (len(rd) + len(ms) - 1) // len(ms)
            t0 = p.now
            for j, m in enumerate(ms):
                p(m)
                for _ in range(per):
                    if rd:
                        l, t = rd.pop(0); p(l, tag=t)
                tick()
                p.now = max(p.now, t0 + 16 * (j + 1))
            if ks == nks - 1 and ('done', n) in hooks: hooks[('done', n)]()

    C0 = -2.0 * math.sqrt(2.0 / math.pi) * math.log2(math.e)
    C1 = C0 * 0.044715
    def gelu(base, n):
        r = lines(f"""s_mov_b32 s4, {fh(C1)}
        s_mov_b32 s5, {fh(C1)}
        v_mov_b32 v22, {fh(C0)}
        v_mov_b32 v23, {fh(C0)}""")
        for g in range(0, n, 4):
            x = [vr(base+g, 2), vr(base+g+2, 2)]; t = [vr(14, 2), vr(16, 2)]
            for i in range(2): r.append(f"v_pk_mul_f32 {t[i]}, {x[i]}, {x[i]}")
            for i in range(2): r.append(f"v_pk_fma_f32 {t[i]}, {t[i]}, s[4:5], v[22:23]")
            for i in range(2): r.append(f"v_pk_mul_f32 {t[i]}, {t[i]}, {x[i]}")
            for i in range(4): r.append(f"v_exp_f32 v{14+i}, v{14+i}")
            for i in range(2): r.append(f"v_pk_add_f32 {t[i]}, {t[i]}, 1.0 op_sel_hi:[1,0]")
            for i in range(4): r.append(f"v_rcp_f32 v{14+i}, v{14+i}")
            for i in range(2): r.append(f"v_pk_mul_f32 {x[i]}, {x[i]}, {t[i]}")
        return r
    def rowred(regs, rors):
        return [f"v_add_f32_dpp {r}, {r}, {r} row_ror:{k} row_mask:0xf bank_mask:0xf" for k in rors for r in regs]

    def get_tag():
        p.wait_vm('tag')
        p(f"""s_mov_b32 {sCNT}, 0
        L_tag:
        v_readfirstlane_b32 {sT0}, v{vTag}
        v_readfirstlane_b32 {sT1}, v{vTag+1}
        s_cmp_lg_u32 {sT0}, 0
        s_cbranch_scc1 L_tagok
        s_add_u32 {sCNT}, {sCNT}, 1
        s_cmp_ge_u32 {sCNT}, {SPIN_LIMIT}
        s_cbranch_scc1 L_tagok""")
        p(f"buffer_load_dwordx2 {vr(vTag,2)}, off, {sDBG}, 0 sc1", tag='untracked')
        p("""s_waitcnt vmcnt(0)
        s_branch L_tag
        L_tagok:""")
    def flag_store(base):
        p(f"""s_lshl_b32 {sA}, s2, 3
        s_add_u32 {sA}, {sA}, {base}
        s_cmp_eq_u32 {sW}, 0
        s_cselect_b32 {sA}, {sA}, {WS_SIZE}
        v_mov_b32 v18, {sT0}
        v_mov_b32 v19, {sT1}
        s_mov_b64 exec, 1""")
        p(f"buffer_store_dwordx2 v[18:19], off, {sWS}, {sA} sc1", tag='flag')
        p("s_mov_b64 exec, -1")
    def flag_issue(base, r, tag):
        p(f"s_mov_b32 {sA}, {base}")
        p(f"buffer_load_dwordx4 {vr(r)}, {vL16}, {sWS}, {sA} offen sc1", tag=tag)
        p(f"buffer_load_dwordx4 {vr(r+4)}, {vL16}, {sWS}, {sA} offen offset:1024 sc1", tag=tag)
    def flag_ops(r):
        ops = [f"v_xor_b32 v{r+i}, {sT0 if i % 2 == 0 else sT1}, v{r+i}" for i in range(8)]
        ops += [f"v_or3_b32 v{r}, v{r}, v{r+1}, v{r+2}", f"v_or3_b32 v{r+3}, v{r+3}, v{r+4}, v{r+5}",
                f"v_or3_b32 v{r}, v{r}, v{r+6}, v{r+7}", f"v_or_b32 v{r}, v{r}, v{r+3}", f"v_cmp_ne_u32 vcc, 0, v{r}"]
        return ops
    def flag_check(base, r, tag):
        lab = f"L_fw{base:x}"
        p.wait_vm(tag)
        p(f"s_mov_b32 {sCNT}, 0\n{lab}:")
        for l in flag_ops(r): p(l)
        p(f"""s_cbranch_vccz {lab}_ok
        s_add_u32 {sCNT}, {sCNT}, 1
        s_cmp_ge_u32 {sCNT}, {SPIN_LIMIT}
        s_cbranch_scc1 {lab}_ok""")
        flag_issue(base, r, 'untracked')
        p(f"s_waitcnt vmcnt(0)\ns_branch {lab}\n{lab}_ok:")

    def pack_tiles(src, swap_pairs):
        r = []
        for ft in range(7):
            r.append(f"v_cvt_pk_bf16_f32 v{PK+2*ft}, v{src+4*ft}, v{src+4*ft+1}")
            r.append(f"v_cvt_pk_bf16_f32 v{PK+2*ft+1}, v{src+4*ft+2}, v{src+4*ft+3}")
        if not swap_pairs:
            for i in range(14): r.append(f"v_min_u32 v{PK+i}, -2, v{PK+i}")
        r += [f"v_mov_b32 v{PK+14}, v{PK+12}", f"v_mov_b32 v{PK+15}, v{PK+13}"]
        for pr in (range(4) if swap_pairs else [3]):
            r.append(f"v_permlane32_swap_b32 v{PK+4*pr}, v{PK+4*pr+2}")
            r.append(f"v_permlane32_swap_b32 v{PK+4*pr+1}, v{PK+4*pr+3}")
        return r

    hk = {('post', o['tag_at']): lambda: p(f"buffer_load_dwordx2 {vr(vTag,2)}, off, {sDBG}, 0 sc1", tag='tag')}
    if o.get('fine'):
        stamp('xrd')
        for n in range(7): hk[('done', n)] = (lambda n=n: stamp(f'c{n}'))
    pipeline(range(8), hk)
    sch['hmax'] = 6; sch['hold'] = o['hold'] > 1
    barrier()
    stamp('z2_mfma')
    get_tag()
    fg(gelu(Z2, 28))
    S2 = [vr(14, 2), vr(16, 2)]
    st = []
    for h in range(2): st.append(f"v_pk_add_f32 {S2[h]}, {vr(Z2+2*h,2)}, {vr(Z2+4+2*h,2)}")
    for ft in range(2, 7):
        for h in range(2): st.append(f"v_pk_add_f32 {S2[h]}, {S2[h]}, {vr(Z2+4*ft+2*h,2)}")
    S = [f'v{14+r}' for r in range(4)]
    st += rowred(S, [8, 4, 2, 1])
    for r in range(4): st.append(f"v_mul_f32 v{MEANI+r}, {fh(1.0/112)}, {S[r]}")
    for ft in range(7):
        for h in range(2): st.append(f"v_pk_add_f32 {vr(Z2+4*ft+2*h,2)}, {vr(Z2+4*ft+2*h,2)}, {vr(MEANI+2*h,2)} neg_lo:[0,1] neg_hi:[0,1]")
    for h in range(2): st.append(f"v_pk_mul_f32 {S2[h]}, {vr(Z2+2*h,2)}, {vr(Z2+2*h,2)}")
    for ft in range(1, 7):
        for h in range(2): st.append(f"v_pk_fma_f32 {S2[h]}, {vr(Z2+4*ft+2*h,2)}, {vr(Z2+4*ft+2*h,2)}, {S2[h]}")
    st += rowred(S, [8, 4, 2, 1])
    st += lines(f"""
    v_cndmask_b32 v18, v{MEANI}, v{MEANI+1}, {sM1}
    v_cndmask_b32 v19, v{MEANI+2}, v{MEANI+3}, {sM1}
    v_cndmask_b32 v24, v18, v19, {sM2}
    v_cndmask_b32 v18, v14, v15, {sM1}
    v_cndmask_b32 v19, v16, v17, {sM1}
    v_cndmask_b32 v25, v18, v19, {sM2}
    v_mov_b32 v26, {sT0}
    v_mov_b32 v27, {sT1}
    s_lshl_b32 {sB}, {sCB}, 10
    s_add_u32 {sA}, {sF}, {sB}
    """)
    fg(st)
    p(f"s_mov_b64 exec, {sLT4}")
    p(f"buffer_store_dwordx4 v[24:27], {vSt0}, {sWS}, {sA} offen sc1", tag='st')
    p(f"""s_mov_b64 exec, -1
    v_lshrrev_b32 v18, 2, {vC}
    v_lshl_add_u32 {vSt0}, v18, 10, {vSt0}
    v_add_u32 {vSt1}, 4096, {vSt0}""")
    p(f"""s_lshl_b32 {sA}, {sRB}, 2
    s_add_u32 {sA}, {sA}, {sOM}
    s_lshl_b32 {sA}, {sA}, 1
    v_lshlrev_b32 v14, 8, {vC}""")
    p(f"buffer_load_ushort {vBsp}, v14, {sBSP}, {sA} offen", tag='bsp')
    if o['t_wo']:
        p(f"""s_lshr_b32 {sA}, s2, 3
        s_lshl_b32 {sA}, {sA}, 2
        s_add_u32 {sA}, {sA}, {sW}
        s_mul_i32 {sA}, {sA}, 7168
        s_and_b32 {sB}, s2, 1
        s_lshl_b32 {sB}, {sB}, 9
        s_add_u32 {sA}, {sA}, {sB}
        v_lshrrev_b32 v14, 2, v0
        v_lshlrev_b32 v14, 10, v14
        v_and_b32 v15, 3, v0
        v_lshl_add_u32 v14, v15, 7, v14
        s_mov_b64 exec, 0xfffffff""")
        p(f"buffer_load_dword v27, v14, {sWOUT}, {sA} offen", tag='touch')
        p("s_mov_b64 exec, -1")
    stamp('stats_pub')

    def stat_issue(tag):
        p(f"buffer_load_dwordx4 {vr(FLG)}, {vSt0}, {sWS}, {sF} offen sc1", tag=tag)
        p(f"buffer_load_dwordx4 {vr(FLG+4)}, {vSt1}, {sWS}, {sF} offen sc1", tag=tag)
    def normalize_publish():
        p.wait_vm('stl')
        F = FLG
        p(f"""s_mov_b32 {sCNT}, 0
        L_stat:
        v_xor_b32 v24, {sT0}, v{F+2}
        v_xor_b32 v25, {sT1}, v{F+3}
        v_xor_b32 v26, {sT0}, v{F+6}
        v_xor_b32 v27, {sT1}, v{F+7}
        v_or3_b32 v24, v24, v25, v26
        v_or_b32 v24, v24, v27
        v_cmp_ne_u32 vcc, 0, v24
        s_cbranch_vccz L_statok
        s_add_u32 {sCNT}, {sCNT}, 1
        s_cmp_ge_u32 {sCNT}, {SPIN_LIMIT}
        s_cbranch_scc1 L_statok""")
        stat_issue('untracked')
        p("s_waitcnt vmcnt(0)\ns_branch L_stat\nL_statok:")
        stamp('stats_in')
        r = [f"v_add_f32 v24, v{F}, v{F+4}"] + rowred(['v24'], [4, 8])
        r += lines(f"""v_mul_f32 v24, {fh(0.125)}, v24
        v_sub_f32 v16, v{F}, v24
        v_sub_f32 v20, v{F+4}, v24
        v_mul_f32 v16, v16, v16
        v_fmac_f32 v16, v20, v20
        v_add_f32 v17, v{F+1}, v{F+5}
        v_fmac_f32 v17, {fh(112.0)}, v16""")
        r += rowred(['v17'], [4, 8])
        r += lines(f"""v_mov_b32 v18, {fh(1e-5)}
        v_fmac_f32 v18, {fh(1.0/896)}, v17
        v_rsq_f32 v25, v18""")
        for i in range(4):
            r.append(f"v_mov_b32_dpp v{18+i}, v24 quad_perm:[{i},{i},{i},{i}] row_mask:0xf bank_mask:0xf")
        for i in range(4):
            r.append(f"v_mov_b32_dpp v{14+i}, v25 quad_perm:[{i},{i},{i},{i}] row_mask:0xf bank_mask:0xf")
        for h in range(2): r.append(f"v_pk_add_f32 {vr(18+2*h,2)}, {vr(MEANI+2*h,2)}, {vr(18+2*h,2)} neg_lo:[0,1] neg_hi:[0,1]")
        for h in range(2): r.append(f"v_pk_mul_f32 {vr(18+2*h,2)}, {vr(18+2*h,2)}, {vr(14+2*h,2)}")
        for ft in range(7):
            for h in range(2): r.append(f"v_pk_fma_f32 {vr(Z2+4*ft+2*h,2)}, {vr(Z2+4*ft+2*h,2)}, {vr(14+2*h,2)}, {vr(18+2*h,2)}")
        r += pack_tiles(Z2, True)
        fg(r)
        z2n_stores(lambda i: PK + 4 * i, 'z2n')
        stamp('z2n_pub')

    sch['hold'] = False
    hooks = {('post', o['poll_after']): lambda: stat_issue('stl'), ('done', o['poll_after']): normalize_publish}
    def zflag_store():
        p.wait_vm('z2n')
        p(f"""s_lshl_b32 {sA}, {sRB}, 3
        s_add_u32 {sA}, {sA}, {sZF}
        v_mov_b32 v18, {sT0}
        v_mov_b32 v19, {sT1}
        s_mov_b64 exec, 1""")
        p(f"buffer_store_dwordx2 v[18:19], off, {sWS}, {sA} sc1", tag='flag')
        p("s_mov_b64 exec, -1")
    def zflag_issue(tag):
        p(f"buffer_load_dwordx2 {vr(FLG,2)}, v{FLG+2}, {sWS}, {sZF} offen sc1", tag=tag)
    def zflag_pre():
        p(f"v_and_b32 v{FLG+2}, 31, v0\nv_lshlrev_b32 v{FLG+2}, 3, v{FLG+2}")
        zflag_issue('fc')
    def zflag_check():
        p.wait_vm('fc')
        p(f"""s_mov_b32 {sCNT}, 0
        L_zf:
        v_xor_b32 v{FLG}, {sT0}, v{FLG}
        v_xor_b32 v{FLG+1}, {sT1}, v{FLG+1}
        v_or_b32 v{FLG}, v{FLG}, v{FLG+1}
        v_cmp_ne_u32 vcc, 0, v{FLG}
        s_cbranch_vccz L_zf_ok
        s_add_u32 {sCNT}, {sCNT}, 1
        s_cmp_ge_u32 {sCNT}, {SPIN_LIMIT}
        s_cbranch_scc1 L_zf_ok""")
        zflag_issue('untracked')
        p("s_waitcnt vmcnt(0)\ns_branch L_zf\nL_zf_ok:", tag='untracked')
        if stamps: p(f"v_writelane_b32 v30, {sCNT}, 30")
    hooks[('done', o['poll_after'] + o['zf_delay'])] = zflag_store
    hooks[('done', 18)] = zflag_pre
    if ('done', 15) not in hooks: hooks[('done', 15)] = lambda: stamp('z1_mfma')
    pipeline(range(8, 20), hooks)
    sch['hmax'] = 8
    barrier()
    stamp('a_mfma')
    zflag_check()
    stamp('zf_ok')
    def frag_load(b, ft, tag):
        v = vL16 if ft < 4 else vL16b
        p(f"buffer_load_dwordx4 {vr(BUF[b]+4*ft)}, {v}, {sWS}, {sOFF[b]} offen offset:{(ft&3)*1024} sc1", tag=tag)
    def frag_loads(b, tag):
        for ft in range(7): frag_load(b, ft, tag)
    def check_ops(b):
        rs = [BUF[b] + i for i in range(28) if i % (4 // o['chk']) == 0]
        ops = [f"v_max3_u32 {vChk}, v{rs[0]}, v{rs[1]}, v{rs[2]}"]
        rs = rs[3:]
        while len(rs) >= 2:
            ops.append(f"v_max3_u32 {vChk}, {vChk}, v{rs[0]}, v{rs[1]}"); rs = rs[2:]
        if rs: ops.append(f"v_max_u32 {vChk}, {vChk}, v{rs[0]}")
        ops.append(f"v_cmp_eq_u32 vcc, -1, {vChk}")
        return ops
    lc = [0]
    def check_branch(b):
        lc[0] += 1
        p(f"""s_cbranch_vccz L_ok{lc[0]}
        s_call_b64 {sRET}, L_retry{b}
        L_ok{lc[0]}:""")
    def z_off(k, t=sA):
        p(f"""s_xor_b32 {t}, {sROT2}, {k}
        s_mul_i32 {t}, {t}, 7168
        s_add_u32 {sOFF[k%3]}, {t}, {sZB}""")
    for k in range(3):
        for ft in range(7):
            def f(k=k, ft=ft):
                if ft == 0 and k == 0: p(f"v_add_u32 {vL16b}, 4096, {vL16}")
                if ft == 0: z_off(k, sG0)
                frag_load(k, ft, ('z', k))
            Q['z'].append((('z', k), f))
    def ztouch(k0, t, tag):
        p(f"""s_add_u32 {t}, {sROT}, {k0}
        s_xor_b32 {t}, {t}, {sROT2}
        s_mul_i32 {t}, {t}, 7168
        s_add_u32 {t}, {t}, {sZB}
        v_lshlrev_b32 {vChk}, 7, v0""", tag=tag)
        p(f"buffer_load_dword {vChk}, {vChk}, {sWS}, {t} offen sc1", tag=tag)
    if o['leader']: Q['z'].append((('z', 2.5), lambda: ztouch(3, sG0, 'zt')))
    r = lines(f"""v_mul_f32 v14, {fh(-math.log2(math.e))}, v{ACA+16}
    v_exp_f32 v14, v14
    v_add_f32 v14, 1.0, v14
    v_rcp_f32 {vG}, v14""")
    for x in range(2):
        r += lines(f"""v_cvt_pk_bf16_f32 v{CFR+4*x}, v{ACA+4*x}, v{ACA+4*x+1}
        v_cvt_pk_bf16_f32 v{CFR+4*x+1}, v{ACA+4*x+2}, v{ACA+4*x+3}
        v_cvt_pk_bf16_f32 v{CFR+4*x+2}, v{ACA+8+4*x}, v{ACA+8+4*x+1}
        v_cvt_pk_bf16_f32 v{CFR+4*x+3}, v{ACA+8+4*x+2}, v{ACA+8+4*x+3}""")
    assert legal('vasm')
    VASM = slot_base('vasm')
    for x in range(2):
        for var in range(2):
            r.append(f"v_mfma_f32_16x16x32_bf16 {vr(G2O+8*x+4*var)}, {vr(COEF+4*var)}, {vr(CFR+4*x)}, 0")
    r += lines(f"""v_lshlrev_b32 v24, 10, {vQ}
    v_lshl_add_u32 v24, {vC}, 4, v24
    s_lshl_b32 {sA}, {sOM}, 2
    s_add_u32 {sA}, {sA}, {VASM}
    v_add_u32 v24, {sA}, v24""")
    fg(r)
    p(f"""s_cmp_lg_u32 {sCB}, 0
    s_cbranch_scc1 L_nofix
    v_mfma_f32_16x16x32_bf16 {vr(G2O+16)}, {vr(COEF+8)}, {vr(CFR)}, 0
    v_mfma_f32_16x16x32_bf16 {vr(G2O+20)}, {vr(COEF+12)}, {vr(CFR)}, 0
    s_lshl_b32 {sA}, {sRB}, 2
    s_add_u32 {sA}, {sA}, {sOM}
    s_lshl_b32 {sA}, {sA}, 6
    s_add_u32 {sA}, {sA}, {WS_G}
    v_lshlrev_b32 v14, 2, {vC}
    s_mov_b64 exec, 0xffff""", tag='untracked')
    p(f"buffer_store_dword {vG}, v14, {sWS}, {sA} offen sc1", tag='untracked')
    p(f"s_mov_b64 exec, {sC0}", tag='untracked')
    for k in range(4):
        re1, im1, re2, im2 = f"v{G2O+k}", f"v{G2O+4+k}", f"v{G2O+16+k}", f"v{G2O+20+k}"
        p(f"""v_add_f32 v14, {re1}, {re2}
        v_add_f32 v15, {im1}, {im2}
        v_sub_f32 v16, {im1}, {im2}
        v_sub_f32 v17, {re2}, {re1}
        v_mul_f32 {re1}, 0.5, v14
        v_mul_f32 {im1}, 0.5, v15
        v_mul_f32 v16, 0.5, v16
        v_mul_f32 v17, 0.5, v17
        v_cvt_pk_bf16_f32 v16, v16, v17
        ds_write_b32 v24, v16 offset:{8192 + k*256}""", tag='untracked')
    p("s_mov_b64 exec, -1\nL_nofix:\ns_nop 7")
    r = []
    k = 0
    for x in range(2):
        for i in range(4):
            t = f"v{16 + (k % 8)}"; k += 1
            r.append(f"v_cvt_pk_bf16_f32 {t}, v{G2O+8*x+i}, v{G2O+8*x+4+i}")
            r.append(f"ds_write_b32 v24, {t} offset:{x*4096 + i*256}")
    fg(r)
    p("s_waitcnt lgkmcnt(0)")
    barrier()
    p(f"""s_add_u32 {sA}, {sW1K}, {VASM}
    v_add_u32 v14, {sA}, {vL16}""")
    for it in range(3):
        p(f"ds_read_b128 {vr(G2O+4*it)}, v14 offset:{it*4096}")
    p(f"""s_lshl_b32 {sB}, {sRB}, 8
    s_add_u32 {sB}, {sB}, {WS_V}
    s_lshl_b32 {sA}, {sCB}, 14
    s_add_u32 {sA}, {sA}, {sB}
    s_add_u32 {sC}, {sA}, 8192
    s_add_u32 {sB}, {sB}, {16*8192}
    s_cmp_eq_u32 {sCB}, 0
    s_cselect_b32 {sB}, {sB}, {WS_SIZE}""")
    if o['z_before_v']:
        drain_h(8)
        while Q['z']: issue('z')
    p("s_waitcnt lgkmcnt(0)")
    pend.add('vasm')
    p(f"buffer_store_dwordx4 {vr(G2O)}, {vVad[0]}, {sWS}, {sA} offen sc1", tag='vst')
    p(f"buffer_store_dwordx4 {vr(G2O+4)}, {vVad[0]}, {sWS}, {sC} offen sc1", tag='vst')
    p(f"s_mov_b64 exec, {sC0}")
    p(f"buffer_store_dwordx4 {vr(G2O+8)}, {vVad[0]}, {sWS}, {sB} offen sc1", tag='vst')
    p("s_mov_b64 exec, -1")
    stamp('v_pub')
    r = gelu(Z1, 28) + [f"v_sub_f32 v24, 1.0, {vG}", "v_mov_b32 v25, v24"]
    for i in range(14): r.append(f"v_pk_mul_f32 {vr(Z1+2*i,2)}, {vr(Z1+2*i,2)}, v[24:25]")
    gel1 = r

    fg(gel1)
    drain_h(8)
    while Q['z']: issue('z')
    stamp('wsp_in')
    p.wait_vm([('z', 0)])
    stamp('z_first')

    def q_wo(part, ldsbase):
        for jj in range(14):
            def f(jj=jj):
                if jj == 0:
                    p(f"s_add_u32 {sG1}, {sD}, {224*1024*part}\ns_mul_i32 {sG2}, {sW}, {14*1024}\ns_add_u32 m0, {sG2}, {ldsbase}")
                elif jj % 4 == 0:
                    p(f"s_add_u32 {sG1}, {sG1}, 32768\ns_add_u32 m0, m0, 4096")
                dma(vWoSrc[jj % 4], sWOUT, sG1, ('wo', part), imm=(jj % 4) * 1024)
            bgq.append(('t', f))
    def VA(kl, dt): return (144 if dt < 2 else 208) + ((dt & 1) * 4 + kl) * 4
    def q_v():
        for dt in range(4):
            for kl in range(4):
                def f(dt=dt, kl=kl):
                    if kl == 0 and dt: p(f"s_add_u32 {sE}, {sE}, {sVS}")
                    p(f"buffer_load_dwordx4 {ar(VA(kl,dt))}, {vChk}, {sWS}, {sE} offen offset:{kl*1024} sc1", tag='vt')
                bgq.append(('t', f))
        for u in range(2):
            def f(u=u):
                p(f"s_lshl_b32 {sG0}, {sTAU[u]}, 6\ns_add_u32 {sG0}, {sG0}, {WS_G}")
                p(f"buffer_load_dword {vG if u == 0 else vG1}, v8, {sWS}, {sG0} offen sc1", tag='g')
            bgq.append(('t', f))
    def p2_mfma(k, u, ft):
        acc = ACC + (u * 7 + ft) * 4
        return f"v_mfma_f32_16x16x32_bf16 {vr(acc)}, {vr(BUF[k%3]+4*ft)}, {ar(64*u+4*k)}, {vr(acc) if k else '0'}"
    for k in range(15):
        if k + 3 < 16: z_off(k + 3)
        extra = []
        if k == 4:
            p.wait_vm('vst'); barrier(); flag_store(WS_FV)
        if k == 9: flag_issue(WS_FV, 16, 'fv')
        if k == 1:
            extra = lines(f"""v_lshrrev_b32 v14, 2, {vC}
            v_and_b32 v15, 1, {vQ}
            v_lshrrev_b32 v16, 3, {vC}
            v_lshl_add_u32 v16, v15, 1, v16
            v_and_b32 v17, 3, {vC}
            v_lshlrev_b32 v17, 3, v17
            s_and_b32 {sB}, {sW}, 1
            s_mul_i32 {sB}, {sB}, 28672
            s_add_u32 {sB}, {sB}, {WO0}
            v_add_u32 v17, {sB}, v17
            v_lshl_add_u32 v14, {vQ}, 2, v14
            v_lshl_add_u32 v14, v14, 7, v17""")
        if k == 2:
            for dt in range(4):
                extra += lines(f"""v_xor_b32 v15, {dt}, v16
                v_lshl_add_u32 {vWoRd[dt]}, v15, 5, v14""")
        if k == 3:
            extra = lines(f"""s_lshl_b32 {sB}, {sW}, 5
            s_add_u32 {sTAU[0]}, {sB}, {sRB}
            s_xor_b32 {sTAU[1]}, {sTAU[0]}, 32
            s_and_b32 {sB}, {sW}, 1
            s_mul_i32 {sB}, {sB}, {14*1024}
            s_add_u32 {sB}, {sB}, {WS_H}
            s_mul_i32 {sHO[0]}, {sTAU[0]}, {28*1024}
            s_add_u32 {sHO[0]}, {sHO[0]}, {sB}
            s_mul_i32 {sHO[1]}, {sTAU[1]}, {28*1024}
            s_add_u32 {sHO[1]}, {sHO[1]}, {sB}""")
        if k == 10:
            extra = lines(f"""v_lshrrev_b32 v28, 3, v0
            v_lshlrev_b32 v29, 10, v28
            v_and_b32 v28, 7, v0
            v_lshlrev_b32 v27, 1, {vQ}
            v_xor_b32 v28, v28, v27
            v_lshl_add_u32 v26, v28, 4, v29
            v_add_u32 v27, 7168, v26
            v_add_u32 v28, 7168, v27
            v_add_u32 v29, 7168, v28
            v_lshlrev_b32 v8, 2, {vC}""")
        if k == 11:
            extra = lines(f"""s_lshr_b32 {sD}, {sW}, 1
            s_mul_i32 {sD}, {sD}, {448*1024}
            s_and_b32 {sB}, {sW}, 1
            s_mul_i32 {sB}, {sB}, {112*1024}
            s_add_u32 {sD}, {sD}, {sB}
            s_lshl_b32 {sB}, {sCB}, 7
            s_add_u32 {sD}, {sD}, {sB}""")
        if k == 12:
            extra = lines(f"""s_sub_u32 {sB}, 0, {sRB}
            s_lshl_b32 {sC}, {sCB}, 2
            s_sub_u32 {sE}, 31, {sC}
            s_cmp_lt_u32 {sCB}, 4
            s_cselect_b32 {sB}, {sRB}, {sB}
            s_cselect_b32 {sC}, {sC}, {sE}
            s_cselect_b32 {sVS}, 1, -1
            s_cselect_b32 {sSG}, 0, 0x80000000
            s_cselect_b64 vcc, -1, 0
            s_lshl_b32 {sVS}, {sVS}, 13
            s_and_b32 {sB}, {sB}, 15
            s_mul_i32 {sE}, {sB}, {VT1}
            s_lshl_b32 {sC}, {sC}, 13
            s_add_u32 {sE}, {sE}, {sC}
            s_and_b32 {sB}, {sW}, 1
            s_lshl_b32 {sB}, {sB}, 12
            s_add_u32 {sE}, {sE}, {sB}
            s_add_u32 {sE}, {sE}, {WS_V}
            v_sub_u32 v14, 16, {vC}
            v_lshrrev_b32 v15, 4, v14
            v_and_b32 v14, 15, v14
            v_lshl_add_u32 v14, v15, 9, v14
            v_cndmask_b32 v14, v14, {vC}, vcc
            v_lshlrev_b32 v14, 4, v14
            v_lshl_add_u32 {vChk}, {vQ}, 8, v14""")
        if k == 13:
            flag_check(WS_FV, 16, 'fv')
            q_wo(0, WO0); q_v(); gate['n'] = o['tailn']
        if k == 3 and o['leader']:
            p(f"s_cmp_ge_u32 {sROT}, 5\ns_cbranch_scc1 L_not2")
            ztouch(11, sA, 'untracked')
            p("L_not2:")
        i = 0
        for ft in range(7):
            for u in range(4):
                p(p2_mfma(k, u, ft))
                if extra: p(extra.pop(0))
                if k >= 13 and u == 3: pump(1)
                i += 1
            if k + 3 < 16: frag_load(k % 3, ft, ('z', k + 3))
        assert not extra
        p.wait_vm([('z', k + 1)])
        if o.get('fine2') and k % 2 == 0: stamp(f'k{k}')
    for u in range(1, 4):
        p(f"""s_xor_b32 {sA}, {sW}, {u}
        s_mul_i32 {sA}, {sA}, {21*1024}
        v_add_u32 v{13+u}, {sA}, {vL16}""")
    p(f"""s_mul_i32 {sA}, {sW}, {21*1024}
    v_add_u32 v17, {sA}, {vL16}""")
    prev = None
    for u in (1, 2, 3, 0):
        for ft in range(7):
            p(p2_mfma(15, u, ft))
            if prev is not None:
                p(f"ds_write_b128 v{13+prev}, {vr(ACC+(prev*7+ft)*4)} offset:{RED + ((prev-1)*7+ft)*1024}")
            else: pump(1)
        prev = u
    stamp('p2_mfma')
    p.wait_vm([('wo', 0)], 'lgkmcnt(0)')
    barrier()
    for u in range(1, 4):
        for ft in range(7):
            p(f"ds_read_b128 {vr(ACC+(u*7+ft)*4)}, v17 offset:{RED + ((u-1)*7+ft)*1024}")
    p(f"v_lshlrev_b32 v24, 16, {vBsp}\nv_mov_b32 v25, v24")
    for i in range(14): p(f"v_pk_add_f32 {vr(ACC+2*i,2)}, {vr(ACC+2*i,2)}, v[24:25]")
    for u in range(1, 4):
        p(f"s_waitcnt lgkmcnt({7*(3-u)})")
        for i in range(14): p(f"v_pk_add_f32 {vr(ACC+2*i,2)}, {vr(ACC+2*i,2)}, {vr(ACC+28*u+2*i,2)}")
    for i in range(14): p(f"v_pk_mul_f32 {vr(ACC+2*i,2)}, {vr(ACC+2*i,2)}, {vr(Z1+2*i,2)}")
    for l in pack_tiles(ACC, False): p(l)
    h_stores(lambda i: PK + 4 * i, 'hst')
    stamp('h_pub')
    barrier()
    gate['n'] = 10**9
    q_wo(1, WO1)
    groups = [(1, 0), (0, 0), (1, 1), (0, 1)]
    for b_, (u, part) in enumerate(groups):
        for ft in range(7):
            def f(b_=b_, u=u, part=part, ft=ft):
                if ft == 0: p(f"s_add_u32 {sOFF[b_]}, {sHO[u]}, {7168*part}")
                frag_load(b_, ft, ('h', b_))
            bgq.append((('h', b_), f))
    FF = 32; A3 = 64; WS1 = 96
    p(f"v_lshrrev_b32 v14, 1, {vQ}\nv_mul_u32_u24 v14, {104*128}, v14")
    for dt in range(4): p(f"v_add_u32 v{WS1+dt}, v14, {vWoRd[dt]}")
    pump(2)
    def wo_reads(part):
        rr = []
        for st in range(7):
            for dt in range(4):
                ab = (part * 7 + st) * 16 + 4 * dt
                for h in range(2):
                    if st < 6:
                        row = 112 * (st // 3) + 32 * (st % 3) + 16 * h
                        rr.append(f"ds_read_b64_tr_b16 {ar(ab+2*h,2)}, {vWoRd[dt]} offset:{row*128}")
                    else:
                        row = 96 + 8 * h
                        rr.append(f"ds_read_b64_tr_b16 {ar(ab+2*h,2)}, v{WS1+dt} offset:{row*128}")
        return rr
    fr = lines(f"""s_and_b32 {sB}, {sW}, 1
    s_lshl_b32 {sB}, {sB}, 6
    v_lshl_add_u32 v24, {vQ}, 2, {sB}
    v_cvt_f32_u32 v24, v24""")
    for u in range(2):
        fr += lines(f"""v_lshl_add_u32 v14, {vC}, 7, {sTAU[u]}
        v_cvt_f32_u32 v14, v14
        v_mul_f32 v14, {fh(1.0/2048)}, v14
        v_xor_b32 v14, {sSG}, v14
        v_mul_f32 v15, v24, v14""")
        for kl in range(4):
            for i in range(4): fr.append(f"v_fmamk_f32 v{16+i}, v14, {fh(float(16*kl+i))}, v15")
            for i in range(4): fr += [f"v_cos_f32 v{20+i}, v{16+i}", f"v_sin_f32 v{112+i}, v{16+i}"]
            for i in range(4): fr.append(f"v_cvt_pk_bf16_f32 v{FF+16*u+4*kl+i}, v{20+i}, v{112+i}")
    rd = wo_reads(0)
    mix = []
    for i, l in enumerate(fr):
        mix.append(l)
        if i % 5 in (1, 3) and rd: mix.append(rd.pop(0))
    mix += rd
    inter(mix, o['tail_every'])
    for r_ in vWoRd + [f'v{WS1+dt}' for dt in range(4)]: p(f"v_subrev_u32 {r_}, {WO0-WO1}, {r_}")
    stamp('f_done')
    force('t')
    p.wait_vm(['vt', 'g'])
    ym = []
    for kl in range(4):
        for u in range(2):
            for dt in range(4):
                acc = A3 + 16 * u + 4 * dt
                c = '0' if kl == 0 else vr(acc)
                ym.append(f"v_mfma_f32_16x16x32_bf16 {vr(acc)}, {ar(VA(kl,dt))}, {vr(FF+16*u+4*kl)}, {c}")
    inter(ym, 4)
    force(('h', 0))
    for i in range(8): p(f"v_pk_mul_f32 {vr(A3+2*i,2)}, {vr(A3+2*i,2)}, v[6:7] op_sel_hi:[1,0]")
    for i in range(8): p(f"v_pk_mul_f32 {vr(A3+16+2*i,2)}, {vr(A3+16+2*i,2)}, v[8:9] op_sel:[0,1] op_sel_hi:[1,1]")
    stamp('y_done')
    force(('h', 1))
    p(f"""s_xor_b32 {sA}, {sW}, 1
    s_lshl_b32 {sA}, {sA}, 12
    s_add_u32 {sA}, {sA}, {RED3}
    v_add_u32 v14, {sA}, {vL16}
    s_add_u32 {sA}, {sW4K}, {RED3}
    v_add_u32 v16, {sA}, {vL16}
    v_lshlrev_b32 v15, 17, {vC}
    v_lshl_add_u32 v15, {vQ}, 3, v15
    s_lshl_b32 {sF}, {sTAU[0]}, 10
    s_lshl_b32 {sB}, {sCB}, 7
    s_add_u32 {sF}, {sF}, {sB}
    s_mov_b32 {sCNT}, 0""")
    p.wait_vm([('h', 0)], 'lgkmcnt(0)')
    barrier()
    rd = wo_reads(1)
    for l in check_ops(0):
        p(l)
        p(rd.pop(0))
    check_branch(0)
    stamp('h_first')
    for b_, (u, part) in enumerate(groups):
        chk = check_ops(b_ + 1) if b_ < 3 else []
        wpos = 27 - len(chk)
        if b_ == 2: p("s_waitcnt lgkmcnt(0)")
        i = 0
        for st in range(7):
            for dt in range(4):
                acc = A3 + 16 * u + 4 * dt
                p(f"v_mfma_f32_16x16x32_bf16 {vr(acc)}, {ar((part*7+st)*16+4*dt)}, {vr(BUF[b_]+4*st)}, {vr(acc)}")
                if i < wpos:
                    for _ in range(2):
                        if rd: p(rd.pop(0))
                if dt == 3: pump(1)
                if chk and i == wpos - 1:
                    force(('h', b_ + 1)); p.wait_vm([('h', b_ + 1)])
                if chk and i >= wpos: p(chk.pop(0))
                if b_ == 3 and 2 <= i < 6: p(f"ds_write_b128 v14, {vr(A3+16+4*(i-2))} offset:{(i-2)*1024}")
                if b_ == 3 and i == 20: p("s_waitcnt lgkmcnt(0)\ns_barrier")
                if b_ == 3 and 21 <= i < 25: p(f"ds_read_b128 {vr(A3+16+4*(i-21))}, v16 offset:{(i-21)*1024}")
                i += 1
        if b_ == 1:
            for l in rd: p(l)
            rd = []
        assert not chk
        if b_ < 3: check_branch(b_ + 1)
    stamp('p3_mfma')
    p("s_waitcnt lgkmcnt(0)")
    for dt in range(4):
        for h in range(2): p(f"v_pk_add_f32 {vr(A3+4*dt+2*h,2)}, {vr(A3+4*dt+2*h,2)}, {vr(A3+16+4*dt+2*h,2)}")
        p(f"v_cvt_pk_bf16_f32 v{18+2*dt}, v{A3+4*dt}, v{A3+4*dt+1}")
        p(f"v_cvt_pk_bf16_f32 v{19+2*dt}, v{A3+4*dt+2}, v{A3+4*dt+3}")
        p(f"buffer_store_dwordx2 {vr(18+2*dt,2)}, v15, {sOUT}, {sF} offen offset:{32*dt} {o['outfl']}")
    if stamps:
        stamp('end')
        p(f"""v_writelane_b32 v30, {sCNT}, 31
        s_lshl_b32 {sA}, s2, 2
        s_add_u32 {sA}, {sA}, {sW}
        s_lshl_b32 {sA}, {sA}, 8
        s_add_u32 {sA}, {sA}, {WS_STAMP}
        v_lshlrev_b32 v14, 3, v0
        s_mov_b64 exec, {sLO32}""")
        p(f"buffer_store_dwordx2 v[30:31], v14, {sWS}, {sA} offen")
    p("L_end:\ns_endpgm")
    for b in range(4):
        p(f"L_retry{b}:")
        frag_loads(b, 'untracked')
        p("s_waitcnt vmcnt(0)")
        for l in check_ops(b): p(l)
        p(f"""s_add_u32 {sCNT}, {sCNT}, 1
        s_cmp_ge_u32 {sCNT}, {SPIN_LIMIT}
        s_cbranch_scc1 L_retry{b}_r
        s_cbranch_vccnz L_retry{b}
        L_retry{b}_r:
        s_setpc_b64 {sRET}""")
    p.raw(f""".section .rodata,"a"
.p2align 6
.amdhsa_kernel {NAME}
  .amdhsa_next_free_vgpr 512
  .amdhsa_next_free_sgpr 102
  .amdhsa_accum_offset 256
  .amdhsa_group_segment_fixed_size 0
  .amdhsa_kernarg_size 112
  .amdhsa_user_sgpr_count 2
  .amdhsa_user_sgpr_kernarg_segment_ptr 1
  .amdhsa_system_sgpr_workgroup_id_x 1
.end_amdhsa_kernel""")
    assert not bgq
    return p.text()

def code_size(txt):
    import subprocess, re
    open('_sz.s', 'w').write(txt)
    subprocess.run(['clang', '-x', 'assembler', '-target', 'amdgcn-amd-amdhsa', '-mcpu=gfx950', '-c', '_sz.s', '-o', '_sz.o'], check=True)
    out = subprocess.run(['llvm-objdump', '-h', '_sz.o'], capture_output=True, text=True).stdout
    return int(re.search(r'\.text\s+([0-9a-f]+)', out).group(1), 16)

def write(fn, stamps=False, opt=None):
    opt = dict(opt or {})
    opt['code_size'] = code_size(gen(stamps, opt)) & ~3
    txt = gen(stamps, opt)
    assert code_size(txt) >= opt['code_size']
    open(fn, 'w').write(txt)
    if stamps: open(fn + '.names', 'w').write('\n'.join(STAMPN))

if __name__ == '__main__':
    stamps = '--stamps' in sys.argv
    out = [a for a in sys.argv[1:] if not a.startswith('--')]
    write(out[0], stamps)
```

```python
import re

TRANS = ('v_exp_f32', 'v_log_f32', 'v_rcp_f32', 'v_rsq_f32', 'v_sqrt_f32', 'v_sin_f32', 'v_cos_f32')

def parse_regs(op):
    op = op.strip()
    op = op.lstrip('-')
    if op.startswith('abs(') or op.startswith('|'):
        op = op.strip('|').replace('abs(', '').rstrip(')')
    m = re.fullmatch(r'([vas])(\d+)', op)
    if m: return {(m.group(1), int(m.group(2)))}
    m = re.fullmatch(r'([vas])\[(\d+):(\d+)\]', op)
    if m: return {(m.group(1), i) for i in range(int(m.group(2)), int(m.group(3)) + 1)}
    if op == 'vcc': return {('vcc', 0)}
    if op in ('vcc_lo', 'vcc_hi'): return {('vcc', 0)}
    if op == 'exec': return {('exec', 0)}
    if op == 'm0': return {('m0', 0)}
    return set()

class Ins:
    def __init__(self, text):
        self.text = text
        t = text.split(';')[0].strip()
        parts = t.split(None, 1)
        self.mn = parts[0]
        rest = parts[1] if len(parts) > 1 else ''
        ops, depth, cur = [], 0, ''
        for ch in rest:
            if ch == '[': depth += 1
            if ch == ']': depth -= 1
            if ch == ',' and depth == 0:
                ops.append(cur); cur = ''
            else: cur += ch
        if cur.strip(): ops.append(cur)
        self.mods = ''
        if ops:
            last = ops[-1].strip().split(None, 1)
            ops[-1] = last[0]
            self.mods = last[1] if len(last) > 1 else ''
        self.ops = [o.strip() for o in ops]
        mn = self.mn
        R = [parse_regs(o) for o in self.ops]
        un = lambda l: set().union(*l) if l else set()
        self.kind = 'other'
        self.w = set(); self.r = set()
        self.states = 1
        self.trans = False; self.dpp = False; self.perm = False; self.rdlane = False
        self.wide_store = False; self.ldsdma = False
        if mn == 's_nop':
            self.kind = 'nop'; self.states = int(self.ops[0], 0) + 1
        elif mn.startswith('v_mfma'):
            self.kind = 'mfma'; self.w = R[0]; self.A = R[1]; self.B = R[2]; self.C = R[3]
            self.r = R[1] | R[2] | R[3]
            self.passes = 8 if '32x32' in mn else 4
        elif mn.startswith('v_'):
            self.kind = 'valu'
            self.trans = any(mn.startswith(x) for x in TRANS)
            self.dpp = ('_dpp' in mn) or ('row_' in self.mods) or ('quad_perm' in self.mods)
            if mn.startswith('v_swap'):
                self.w = R[0] | R[1]; self.r = R[0] | R[1]
            elif mn.startswith('v_permlane'):
                self.perm = True; self.w = R[0] | R[1]; self.r = R[0] | R[1]
            elif mn.startswith(('v_add_co', 'v_sub_co', 'v_addc_co', 'v_subb_co', 'v_subrev_co')):
                self.w = R[0] | R[1]; self.r = un(R[2:])
            else:
                self.w = R[0]; self.r = un(R[1:])
                if mn.startswith(('v_fmac', 'v_pk_fmac', 'v_dot2c', 'v_writelane')) or self.dpp: self.r |= R[0]
            if mn.startswith(('v_readfirstlane', 'v_readlane')): self.rdlane = True
        elif mn.startswith('ds_'):
            self.kind = 'ds'
            if mn.startswith(('ds_read', 'ds_bpermute', 'ds_permute', 'ds_swizzle')):
                self.w = R[0]; self.r = un(R[1:])
            else:
                self.r = un(R)
        elif mn.startswith(('buffer_', 'global_')):
            self.kind = 'vmem'
            mods = ' ' + self.mods + ' '
            if ' lds ' in mods or '_lds_' in mn:
                self.ldsdma = True; self.r = un(R) | {('m0', 0)}
            elif '_load' in mn:
                self.w = R[0]; self.r = un(R[1:])
            else:
                self.r = un(R)
                if 'x4' in mn or 'x3' in mn:
                    self.wide_store = True
                    self.data = R[0] if mn.startswith('buffer_') else R[1]
        elif mn.startswith('s_'):
            self.kind = 'salu'
            if mn.startswith(('s_cmp', 's_cbranch', 's_branch', 's_waitcnt', 's_barrier', 's_sleep', 's_setprio', 's_endpgm', 's_setpc', 's_bitcmp')):
                self.r = un(R)
            else:
                self.w = R[0] if R else set(); self.r = un(R[1:])
                if 'saveexec' in mn: self.w |= {('exec', 0)}

def vec(s): return {x for x in s if x[0] in 'va' and x[0] != 'vcc'}
def sca(s): return {x for x in s if x[0] in ('s', 'vcc')}

def need(p, c):
    n = 0
    if p.kind == 'valu':
        pw = vec(p.w); ps = sca(p.w)
        if c.kind == 'mfma' and pw & c.r: n = max(n, 2)
        if c.kind == 'valu':
            if p.trans and not c.trans and pw & c.r: n = max(n, 1)
            if p.trans and c.trans and pw & c.r: n = max(n, 1)
            if (c.dpp or c.perm) and pw & c.r: n = max(n, 2)
            if c.rdlane and pw & c.r: n = max(n, 1)
            if ps & c.r: n = max(n, 4 if c.rdlane else 2)
        if c.kind == 'vmem' and ps & c.r: n = max(n, 5)
        if c.kind == 'salu' and ps & c.r: n = max(n, 1)
    if p.kind == 'mfma':
        big = {4: 8, 8: 12}[p.passes]
        if c.kind == 'mfma':
            if p.w & (c.A | c.B): n = max(n, big)
            if p.w & c.C and not (p.w == c.C and p.passes == c.passes): n = max(n, big - 2)
            if p.w & c.w and not (p.w == c.C and p.passes == c.passes): n = max(n, big - 2)
        elif c.kind in ('valu', 'ds', 'vmem'):
            if p.w & (c.r | c.w): n = max(n, big)
        if c.kind == 'valu' and p.C & c.w: n = max(n, {4: 3, 8: 7}[p.passes])
    if p.kind == 'salu' and ('m0', 0) in p.w and c.ldsdma: n = max(n, 1)
    if p.kind == 'vmem' and p.wide_store and p.data & c.w:
        n = max(n, 2 if c.kind == 'valu' else 1)
    return n

def cost(mn):
    if mn.startswith('v_mfma'): return 5
    if mn.startswith(TRANS): return 9
    if mn.startswith('v_pk'): return 6
    if mn.startswith('v_'): return 5
    if mn.startswith('ds_read_b128'): return 16
    if mn.startswith('ds_read'): return 10
    if mn.startswith('ds_write_b128'): return 50
    if mn.startswith('ds_write'): return 16
    if mn.startswith(('buffer_', 'global_')): return 10
    if mn == 's_barrier': return 30
    return 4

class Prog:
    def __init__(self):
        self.items = []
        self.vm = []
        self.lg = []
        self.lg_done = 0
        self.now = 0.0
    def __call__(self, s, tag=None):
        for l in s.strip('\n').split('\n'):
            l = l.strip()
            if not l or l.startswith(';'): continue
            if l.endswith(':'):
                self.items.append(('l', l[:-1])); continue
            self.items.append(('i', l))
            mn = l.split()[0]
            if tag == 'untracked': continue
            if mn.startswith(('buffer_', 'global_')): self.vm.append(tag)
            if mn.startswith('ds_'): self.lg.append(tag)
            if mn == 's_waitcnt':
                m = re.search(r'lgkmcnt\((\d+)\)', l)
                if m: self.lg_done = max(self.lg_done, len(self.lg) - int(m.group(1)))
            self.now += cost(mn)
    def raw(self, s): self.items.append(('raw', s))
    def comment(self, s): self.items.append(('raw', '    ; ' + s))
    def vm_after(self, tags):
        if not isinstance(tags, (list, tuple, set)): tags = [tags]
        idx = max(i for i, t in enumerate(self.vm) if t in tags)
        return len(self.vm) - 1 - idx
    def wait_vm(self, tags, extra=''):
        n = min(self.vm_after(tags), 63)
        self(f"s_waitcnt vmcnt({n}) {extra}".strip())
    def wait_lg(self, tag):
        idx = max(i for i, t in enumerate(self.lg) if t == tag)
        if idx < self.lg_done: return
        self(f"s_waitcnt lgkmcnt({min(len(self.lg) - 1 - idx, 15)})")
    def lg_complete(self, tag):
        idx = max(i for i, t in enumerate(self.lg) if t == tag)
        return idx < self.lg_done
    def text(self):
        out = []; hist = []; pos = 0; nops = 0
        for kind, t in self.items:
            if kind == 'raw': out.append(t); continue
            if kind == 'l': out.append(t + ':'); continue
            c = Ins(t)
            req = 0
            for (pp, p) in hist:
                d = pos - pp
                nd = need(p, c)
                if nd > d: req = max(req, nd - d)
            while req > 0:
                k = min(req, 16)
                out.append(f"    s_nop {k-1}"); pos += k; req -= k; nops += 1
            out.append('    ' + t)
            pos += c.states
            hist.append((pos, c))
            hist = [(pp, p) for (pp, p) in hist if pos - pp < 24]
        self.nops = nops
        return '\n'.join(out) + '\n'
```

```python
import sys, math, struct
from prog import Prog

NAME = 'gated_mix__spectral_fnet__mixer_gmlp__prompt_kernel'

HEADER = """; gated_mix(spectral FNet, mixer gMLP): one persistent launch, 256 workgroups (one per CU), 4 waves each.
; Workgroup (rb, cb): rows {128a + 4rb + i}, 112 hidden columns.
;   P1  z2 = gelu(x w_in) -> row statistics exchanged through d_ws (tagged granules) -> normalised z2 published;
;       z1 kept in registers; hidden-dim DFT + 16-point sequence DFT stage published as V; w_sp tile staged into AGPRs.
;   P2  g = w_sp z2n + b (K split over the waves, 4 column passes, LDS reduction), h = z1 (1-gate) g published.
; Hand-offs use write-through (sc1) stores and sc1 loads guarded by a per-launch tag (d_debug) or a sentinel; every spin is bounded."""

def f2u(x): return struct.unpack('<I', struct.pack('<f', x))[0]
def fh(x): return f"0x{f2u(x):08x}"

WS_Z2N = 0
WS_H = 0x400000
WS_V = 0x800000
VT1 = 17 * 8192
WS_ST = 0xC00000
WS_G = 0xC80000
WS_FC = 0xC90000
WS_FV = 0xCA0000
WS_STAMP = 0xD00000
WS_SIZE = 0x1000000
SL = 16 * 1040 + 16
NSL = 5
RING = 4 * SL
HB = 8 * 1040
GATE = 9 * SL
RED = 32768
VASM = 163840 - 12288
WO0 = 106496
WO1 = 0
RED3 = 90112
LDS_TOTAL = 163840
SPIN_LIMIT = 200000

sX, sHRE, sHIM, sWIN, sWSP, sWOUT, sOUT, sWS, sDBG, sBSP, sGATE = [f"s[{8+4*i}:{11+4*i}]" for i in range(11)]
SRD = dict(X=8, HRE=12, HIM=16, WIN=20, WSP=24, WOUT=28, OUT=32, WS=36, DBG=40, BSP=44, GATE=48)
KOFF = dict(X=0, WIN=48, HRE=24, HIM=32, WS=104, DBG=96, WSP=56, WOUT=72, OUT=88, BSP=64, GATE=80)
sRB, sCB, sW, sOM, sT0, sT1, sROT2, sW1K = 's52', 's53', 's54', 's55', 's56', 's57', 's58', 's59'
sM1, sM2, sLT4, sLO32, sC0 = 's[60:61]', 's[62:63]', 's[64:65]', 's[66:67]', 's[68:69]'
sRET = 's[70:71]'
sOFF = ['s72', 's73', 's74', 's75']
sA, sB, sC, sD, sE, sF = 's76', 's77', 's78', 's79', 's80', 's81'
sCNT, sZB, sZST, sHST, sHS1 = 's82', 's83', 's84', 's85', 's86'
sG0, sG1, sG2 = 's87', 's88', 's89'
sKC = [f's{90+i}' for i in range(8)]
sROT = 's3'
sWSB = 's72'
sWSM = ['s73', 's74']
sZF = 's75'
sWD = 's70'

vL16, vL16b, vC, vQ, vBsp, vG = 'v1', 'v2', 'v3', 'v4', 'v5', 'v6'
vG1, vWspRd, vZst = 'v9', 'v11', 'v12'
vVad = ['v7']
vWinSrc = ['v8', 'v9', 'v13', 'v6']
vWspSrc = ['v10', 'v28', 'v29', 'v2']
vWoSrc = ['v9', 'v13', 'v26', 'v27']
vWoRd = ['v7', 'v10', 'v11', 'v12']
sTAU = ['s90', 's91']
sHO = ['s92', 's93']
sVS, sSG = 's94', 's95'
sWO, sWO1 = 's96', 's97'
sZK = [f's{8+i}' for i in range(16)]
vZld = 'v8'
ZR = 172; FF = 124; BS4 = 156; PKH = 160
WOB = [RING + i * SL for i in (3, 4, 0, 1, 2)] + [0, 16384]
WO_DEP = [['c13'], ['c14'], ['c15'], ['c16'], ['c17'], ['xh'], ['xh']]
sW4K = 's6'
sWDO = 's7'
vChk = 'v13'
Z1 = 32
ACC = 60
BUF = [172, 200, 228, 144]
Z2 = 60; ACA = 88; PK = 108; COEF = 240; FLG = 164
G2O = 60; CFR = 108
FB = [172, 188, 204]
FBA = [172, 60, 192]
vWinRd = [f'v{220+i}' for i in range(4)]
vWinRd2 = [f'v{232+i}' for i in range(4)]
vGateRd = 'v224'
vWdRd = 'v225'
vWdRdS = 'v236'
vWdA = 238
vRow = [f'v{226+i}' for i in range(4)]
vExW, vExR = 'v230', 'v231'
MEANI = 156
vSt0, vSt1 = 'v160', 'v161'
vTag = 162
vXrd1, vXrd2, vXrd1p, vXrd2p = 'v20', 'v21', 'v18', 'v19'
FPARK = 0
FA = [128, 192]
XF1, XF1P, XF2P, XF2 = 0, 64, 128, 192

def vr(b, n=4): return f"v[{b}:{b+n-1}]"
def ar(b, n=4): return f"a[{b}:{b+n-1}]"
def lines(s): return [l.strip() for l in s.strip('\n').split('\n') if l.strip() and not l.strip().startswith(';')]

def gen(stamps=False, opt=None):
    o = dict(xfl='', wfl='', sfl='', poll_after=13, t_win=90, t_h=80, lat=700, bmax=300, hold_c=5, zf_delay=2, leader=False, v_late=True, wo_order=[0, 1, 2, 3, 4, 5, 6], wo_every=5, h2_at=30, h3_at=90, wo_lag=0, hrate=2, hwait=False, hfine=1, stat1=False, pf0w=0, pf0w_late=False, pf0=2, out_mode=2, tlb_list=(sWS, sWSP, sBSP), pre_store=False, wo_defer=0, wo_bar=0, pfs_at='c1', pfw_at='c7', pffl='', pf_full=False, pf_cost=1500, tlbw=1, tlb_sh=21, tlb_w0=True, zx=1, x_first=4, c0_early=False, bmax_z2=300, clr_at='p2', clr_gap=12, zst_gap=0, pre_c=1, xrate=6, f_where=2, ynr=2, snr=1, bg3e=3, norm_fill=False, gelu_fill=0, rot2m=15, rots=0, rotm=7, xm=3, hm=1, pf_rate=[2, 1.7], zf_at=19, post_n=13, rot2=1, f_pre=False, fgap=1, fv_at=76, hold=0, tag_at=3, omask=0, gmul=3, b_wd=True, tw_after=None, tg_after=None, tail_every=12, t_wd=False, t_wo=False, sfl2='', chk=4, tailn=14, w0_after=7, code_pf=True, lead=3,
             h_issue='late', outfl='sc1', w0_read=9, code_size=1024,
             rate_z2=[8]*8, gelu_every=14, post_stats=8, rate_z1=8, z2_extra=8, pre_x=0, fg_every=6)
    o.update(opt or {})
    p = Prog()
    global STAMPN
    STAMPN = []
    def stamp(name):
        if o.get('enc') == name:
            p("s_memrealtime s[98:99]\ns_waitcnt lgkmcnt(0)", tag='untracked')
        if not stamps: return
        i = len(STAMPN)
        p(f"""s_memrealtime s[98:99]
        s_memtime s[100:101]
        s_waitcnt lgkmcnt(0)
        v_writelane_b32 v30, s98, {i}
        v_writelane_b32 v31, s100, {i}""", tag='untracked')
        if o.get('verbose'): print('model', name, int(p.now), 'pipe', int(sch['pipe']), 'h issued', 8 - (len(Q['h']) + 7) // 8, 'read', len(done_h), 'c left', len(Q['c']) // 4)
        STAMPN.append(name)

    ring = [f'c{n}' for n in range(18)]
    pos = {it: i for i, it in enumerate(ring)}
    freed = set(); pend = set()
    bgq = []
    def legal(it):
        if it in pos: return pos[it] < NSL or ring[pos[it] - NSL] in freed
        if isinstance(it, str) and it[0] == 'h':
            j = int(it[1:])
            return ('x' if j < 2 else f'h{j-2}') in freed
        if it[0] == 'z': return it[1] < 17 or 'fb' in freed
        if it[0] == 'wo': return all(x in freed for x in WO_DEP[it[1]])
        return True
    gate = {'n': 10**9}
    def pump(n=1):
        while n > 0 and bgq and legal(bgq[0][0]) and gate['n'] > 0:
            bgq.pop(0)[1](); n -= 1; gate['n'] -= 1
    def set_gate(it, extra):
        idx = [i for i, q in enumerate(bgq) if q[0] == it]
        gate['n'] = (idx[-1] + 1 if idx else 0) + extra
    def force(it):
        while any(q[0] == it for q in bgq):
            assert legal(bgq[0][0]), (it, bgq[0][0])
            bgq.pop(0)[1](); gate['n'] -= 1
    def barrier():
        p("s_barrier")
        freed.update(pend); pend.clear()
    def inter(ins, every):
        for i, l in enumerate(ins):
            p(l)
            if every and i % every == every - 1: pump(1)
    def slot_base(it): return RING + (pos[it] % NSL) * SL

    def dma(voff, srd, soff, tag, imm=0, flags=''):
        s = f"buffer_load_dwordx4 {voff}, {srd}, {soff} offen"
        if imm: s += f" offset:{imm}"
        if flags: s += ' ' + flags
        p(s + ' lds', tag=tag)

    def q_x():
        for g in range(4):
            for i in range(4):
                def f(g=g, i=i):
                    if i == 0:
                        p(f"""s_xor_b32 {sG1}, {sD}, {g}
                        s_lshl_b32 {sG2}, {sG1}, 17
                        s_add_u32 {sG2}, {sG2}, {sE}
                        s_mul_i32 {sG1}, {sG1}, {4*1040}
                        s_add_u32 m0, {sG1}, {sG0}""")
                    dma(vRow[i], sX, sG2, 'x', imm=i*1040, flags=o['xfl'])
                bgq.append(('x', f))
    def q_chunk(n):
        it = f'c{n}'
        for jj in range(4):
            def f(jj=jj):
                if n < 16:
                    if jj == 0:
                        if n == 8:
                            for r in vWinSrc: p(f"v_subrev_u32 {r}, {sWD}, {r}")
                        p(f"s_add_u32 m0, {sW4K}, {slot_base(it)}")
                    dma(vWinSrc[jj], sWIN, sKC[n & 7], it, imm=jj*1024, flags=o['wfl'])
                else:
                    x = n - 16
                    if jj == 0:
                        p(f"""s_add_u32 {sG0}, {sWDO}, {x*16384}
                        s_mul_i32 {sG1}, {sW}, {4*1040}
                        s_add_u32 m0, {sG1}, {slot_base(it)}""")
                        if x: p(f"v_add_co_u32 v{vWdA}, s[48:49], s50, v{vWdA}\nv_addc_co_u32 v{vWdA+1}, s[48:49], 0, v{vWdA+1}, s[48:49]")
                        p(f"global_load_lds_dwordx4 {vr(vWdA,2)}, off", tag=it)
                    elif jj < 3:
                        dma(vRow[2*jj-1], sHRE, sG0, it, imm=(2*jj-1)*1040, flags=o['wfl'])
                    else:
                        p("s_add_u32 m0, m0, 32")
                        p(f"global_load_lds_dwordx4 {vr(vWdA,2)}, off offset:2048", tag=it)
            bgq.append((it, f))
    def q_wsp(j, tag=None):
        it = f'h{j}'; u, hh = j >> 1, j & 1
        for i in range(8):
            def f(i=i):
                if i == 0:
                    p(f"s_xor_b32 {sG2}, {sWSB}, {(u << 12) + (hh << 7)}")
                    p(f"s_add_u32 m0, {sWSM[0]}, {hh*HB}")
                if i == 4:
                    p(f"s_xor_b32 {sG2}, {sG2}, {1 << 22}")
                    p(f"s_add_u32 m0, {sWSM[1]}, {hh*HB}")
                dma(vWspSrc[i % 4], sWSP, sG2, tag or it, imm=(i % 4) * 1040, flags=o['sfl'])
            bgq.append((it, f))
    def gpf_wsp():
        p(f"""v_lshrrev_b32 v88, 3, v0
        v_lshlrev_b32 v88, 19, v88
        v_and_b32 v89, 7, v0
        v_lshl_add_u32 v88, v89, 7, v88
        s_lshl_b32 {sG1}, {sRB}, 2
        s_and_b32 {sG2}, {sCB}, 3
        s_add_u32 {sG1}, {sG1}, {sG2}
        s_lshl_b32 {sG1}, {sG1}, 12
        s_add_u32 {sG1}, {sG1}, {sW1K}
        s_and_b32 {sG2}, s2, 1
        s_lshl_b32 {sG2}, {sG2}, 22
        s_add_u32 {sG1}, {sG1}, {sG2}""")
        if o['pf0w']: p(f"s_bfm_b64 exec, {64 - o['pf0w']}, {o['pf0w']}")
        p(f"buffer_load_dword v90, v88, {sWSP}, {sG1} offen {o['pffl']}", tag='pf')
        if o['pf0w']: p("s_mov_b64 exec, -1")
        if o['pf_full']:
            p(f"s_xor_b32 {sG1}, {sG1}, {1 << 22}")
            p(f"buffer_load_dword v90, v88, {sWSP}, {sG1} offen {o['pffl']}", tag='pf')
        sch['pipe'] = max(sch['pipe'], p.now) + o['pf_cost']
    def gpf_small():
        assert sch['hmax'] <= 1
        p(f"""s_lshl_b32 {sG1}, {sRB}, 4
        s_and_b32 {sG2}, {sCB}, 3
        s_lshl_b32 {sG2}, {sG2}, 2
        s_add_u32 {sG1}, {sG1}, {sG2}
        s_add_u32 {sG1}, {sG1}, {sW}
        s_and_b32 s4, s2, 1
        v_lshlrev_b32 v88, 7, v0
        s_mul_i32 {sG2}, {sG1}, 3584
        s_mul_i32 s5, s4, 896
        s_add_u32 {sG2}, {sG2}, s5
        s_mov_b64 exec, 0x7f""")
        if o['pf0'] != 2: p(f"buffer_load_dword v90, v88, {sWIN}, {sG2} offen", tag='pf')
        p(f"""s_lshl_b32 {sG2}, {sG1}, 8
        s_lshl_b32 s5, s4, 17
        s_add_u32 {sG2}, {sG2}, s5
        s_and_b32 s5, {sG1}, 6
        s_cmp_eq_u32 s5, 2
        s_cselect_b32 s5, 0x100000, {sG2}
        s_cselect_b32 {sG2}, {sG2}, 0x100000
        s_sub_u32 {sG2}, {sG2}, 512
        s_mov_b64 exec, 3""")
        p(f"buffer_load_dword v90, v88, {sHRE}, s5 offen offset:64", tag='pf')
        p(f"buffer_load_dword v90, v88, {sHIM}, {sG2} offen offset:64", tag='pf')
        p(f"""s_mov_b64 exec, 0xff
        v_lshrrev_b32 v88, 2, v0
        v_lshlrev_b32 v88, 10, v88
        v_and_b32 v89, 3, v0
        v_lshl_add_u32 v88, v89, 7, v88
        s_lshl_b32 {sG2}, {sG1}, 11
        s_lshl_b32 s5, s4, 9
        s_add_u32 {sG2}, {sG2}, s5""")
        p(f"buffer_load_dword v90, v88, {sWOUT}, {sG2} offen", tag='pf')
        p("s_mov_b64 exec, -1")
    Q = {}
    q_x(); Q['x'] = bgq[:]; bgq.clear()
    for n in range(18): q_chunk(n)
    Q['c'] = bgq[:]; bgq.clear()
    for j in range(8): q_wsp(j)
    Q['h'] = bgq[:]; bgq.clear()
    Q['z'] = []; Q['w'] = []
    sch = dict(pipe=0.0, cur=None, cnt=0, need=0, hmax=0, hq=[], hpend=[], hold=False, valu=False)
    landed = {}
    done_h = []
    def issue(qn):
        it, f = Q[qn].pop(0)
        assert legal(it), it
        f()
        t = o['t_win'] if (qn == 'c' and int(it[1:]) < 16) else (o['t_h'] if qn == 'h' else 72)
        sch['pipe'] = max(sch['pipe'], p.now) + t
        landed[it] = sch['pipe'] + o['lat']
        sch['cnt'] = (sch['cnt'] + 1) % 4 if qn != 'z' else 0
        sch['cur'] = qn if sch['cnt'] else None
        if not sch['cur']:
            if it == o['pfs_at'] and not any(q[0] == it for q in Q[qn]): gpf_small()
            if o['pf0w'] < 64 and it == o['pfw_at'] and not any(q[0] == it for q in Q[qn]): gpf_wsp()
    def sforce(qn, it):
        while any(q[0] == it for q in Q[qn]):
            issue(sch['cur'] or qn)
    def swait(it, extra=''):
        p.wait_vm([it], extra)
        p.now = max(p.now, landed.get(it, 0))
    def pick():
        if sch['cur']: return sch['cur']
        cok = Q['c'] and legal(Q['c'][0][0])
        hok = Q['h'] and legal(Q['h'][0][0]) and not sch['hold']
        if cok and int(Q['c'][0][0][1:]) < 8: return 'c'
        if cok and int(Q['c'][0][0][1:]) - sch['need'] < o['lead'] and not (sch['hold'] and int(Q['c'][0][0][1:]) >= 8 + o['hold_c']): return 'c'
        if hok: return 'h'
        if cok and not (sch['hold'] and int(Q['c'][0][0][1:]) >= 8 + o['hold_c']): return 'c'
        if Q['z'] and legal(Q['z'][0][0]): return 'z'
        if Q['w'] and legal(Q['w'][0][0]): return 'w'
        return None
    def tick():
        for j in sch['hpend'][:]:
            if p.lg_complete(f'h{j}'): freed.add(f'h{j}'); sch['hpend'].remove(j)
            elif (sch['valu'] or o['hwait']) and p.now >= sch['ht'] + 120:
                p.wait_lg(f'h{j}'); freed.add(f'h{j}'); sch['hpend'].remove(j)
        if sch['hq']:
            for _ in range(o['hrate']):
                l, j = sch['hq'].pop(0)
                p(l, tag=f'h{j}')
            if not sch['hq']: sch['hpend'].append(j); sch['ht'] = p.now
        else:
            j = len(done_h)
            if j < sch['hmax'] and not any(q[0] == f'h{j}' for q in Q['h']) and p.now >= landed[f'h{j}']:
                start_h(j)
        urgent = Q['c'] and int(Q['c'][0][0][1:]) < 8
        if sch['pipe'] - p.now < (o['bmax_z2'] if urgent else o['bmax']):
            qn = pick()
            if qn: issue(qn)
    def start_h(j):
        done_h.append(j)
        sforce('h', f'h{j}')
        swait(f'h{j}')
        for k in range(8):
            b = 32 * j + 4 * k
            sch['hq'].append((f"ds_read_b64 {ar(b,2)}, {vWspRd} offset:{(j&1)*HB + 16*k}", j))
            sch['hq'].append((f"ds_read_b64 {ar(b+2,2)}, {vWspRd} offset:{(j&1)*HB + 16*k+256}", j))
    def fg(ins):
        sch['valu'] = True
        for l in ins:
            p(l); tick()
        sch['valu'] = False
    def drain_h(upto):
        sch['valu'] = True
        while sch['hq'] or sch['hpend'] or len(done_h) < upto:
            if not sch['hq'] and not sch['hpend'] and len(done_h) < upto:
                start_h(len(done_h))
            if not sch['hq']: p.now += 50
            tick()
        sch['valu'] = False

    p.raw(HEADER)
    p.raw(f"; @launch grid=(256,1,1) block=(256,1,1) lds={LDS_TOTAL}")
    p.raw('.amdgcn_target "amdgcn-amd-amdhsa--gfx950"')
    p.raw(f".text\n.globl {NAME}\n.p2align 8\n.type {NAME},@function\n{NAME}:")
    nl = (o['code_size'] + 32 * 128 - 1) // (32 * 128)
    sizes = dict(X=2048*1024+64, HRE=512*1024+64, HIM=512*1024+64, WIN=512*3584, WSP=2048*4096, WOUT=896*1024,
                 OUT=2048*1024, WS=WS_SIZE, DBG=256, BSP=4096, GATE=1024+64)
    p(f"""s_cmp_ge_u32 s2, 256
    s_cbranch_scc1 L_end
    s_load_dwordx2 s[8:9], s[0:1], 0
    s_load_dwordx2 s[20:21], s[0:1], 48
    s_load_dwordx2 s[24:25], s[0:1], 56
    s_getpc_b64 s[4:5]
    s_lshr_b32 {sB}, s2, 3
    s_mul_i32 {sA}, {sB}, {nl}
    v_min_u32 v15, {nl-1}, v0
    v_add_lshl_u32 v15, v15, {sA}, 7
    v_min_u32 v15, {o['code_size'] - 64}, v15
    v_lshrrev_b32 v14, 6, v0""")
    if o['code_pf']: p("global_load_dword v27, v15, s[4:5]", tag='cpf')
    p(f"""v_readfirstlane_b32 {sW}, v14
    v_and_b32 v0, 63, v0
    s_lshr_b32 {sROT}, s2, 5
    s_and_b32 {sA}, s2, 6
    s_lshl_b32 {sA}, {sA}, 2
    s_add_u32 {sRB}, {sA}, {sROT}
    s_and_b32 {sD}, {sB}, 3
    v_lshlrev_b32 {vL16}, 4, v0
    s_lshl_b32 {sA}, {sROT}, 5
    v_xor_b32 v14, {sA}, {vL16}
    v_add_u32 {vRow[0]}, 64, v14
    v_add_u32 {vRow[1]}, 48, v14
    v_add_u32 {vRow[2]}, 32, v14
    v_add_u32 {vRow[3]}, 16, v14
    s_mov_b32 s10, {sizes['X']}
    s_mov_b32 s11, 0x20000
    s_lshl_b32 {sE}, {sW}, 19
    s_lshl_b32 {sA}, {sRB}, 12
    s_add_u32 {sE}, {sE}, {sA}
    s_mul_i32 {sG0}, {sW}, {SL}
    s_waitcnt lgkmcnt(0)
    s_sub_u32 s8, s8, 64
    s_subb_u32 s9, s9, 0""")
    for _ in range(4): issue('x')
    p(f"s_mov_b32 s22, {sizes['WIN']}\ns_mov_b32 s23, 0x20000")
    if o['pf0']:
        p(f"""s_lshl_b32 {sA}, {sRB}, 2
        s_add_u32 {sA}, {sA}, {sD}
        s_lshl_b32 {sA}, {sA}, 2
        s_add_u32 {sA}, {sA}, {sW}
        s_mul_i32 {sA}, {sA}, 3584
        s_and_b32 {sC}, s2, 1
        s_mul_i32 {sC}, {sC}, 896
        s_add_u32 {sA}, {sA}, {sC}
        v_lshrrev_b32 v14, 3, v0
        v_mul_u32_u24 v14, 768, v14
        v_lshl_add_u32 v14, v0, 7, v14
        s_mov_b64 exec, {'0x7f7f' if o['pf0'] == 2 else '0x7f00'}""")
        p(f"buffer_load_dword v27, v14, {sWIN}, {sA} offen", tag='pf')
        p("s_mov_b64 exec, -1")
    p(f"s_mov_b32 s26, {sizes['WSP']}\ns_mov_b32 s27, 0x20000")
    def pf0w():
        p(f"""s_lshl_b32 {sA}, {sRB}, 2
        s_add_u32 {sA}, {sA}, {sD}
        s_lshl_b32 {sA}, {sA}, 2
        s_add_u32 {sA}, {sA}, {sW}
        s_lshl_b32 {sA}, {sA}, 10
        s_and_b32 {sC}, s2, 1
        s_lshl_b32 {sC}, {sC}, 22
        s_add_u32 {sA}, {sA}, {sC}
        v_lshrrev_b32 v14, 3, v0
        v_lshlrev_b32 v14, 19, v14
        v_and_b32 v15, 7, v0
        v_lshl_add_u32 v14, v15, 7, v14
        s_bfm_b64 exec, {o['pf0w'] % 64}, 0""".replace('s_bfm_b64 exec, 0, 0', 's_nop 0'))
        p(f"buffer_load_dword v27, v14, {sWSP}, {sA} offen", tag='pf')
        p("s_mov_b64 exec, -1")
    if o['pf0w'] and not o['pf0w_late']: pf0w()
    for kname, off in KOFF.items():
        if kname not in ('X', 'WIN', 'WSP'): p(f"s_load_dwordx2 s[{SRD[kname]}:{SRD[kname]+1}], s[0:1], {off}")
    p("s_memrealtime s[56:57]")
    for _ in range(o['x_first']): issue('x')
    if o['pf0w'] and o['pf0w_late']: pf0w()
    p(f"""s_and_b32 {sA}, s2, 1
    s_lshl_b32 {sCB}, {sA}, 2
    s_add_u32 {sCB}, {sCB}, {sD}
    s_mov_b32 {sOM}, {sW}
    s_lshl_b32 {sW4K}, {sW}, 12
    s_lshl_b32 {sROT2}, {sROT}, 1
    s_lshl_b32 {sW1K}, {sW}, 10
    v_and_b32 {vC}, 15, v0
    v_lshrrev_b32 {vQ}, 4, v0""")
    for kname, b in SRD.items():
        if kname not in ('X', 'WIN', 'WSP'): p(f"s_mov_b32 s{b+2}, {sizes[kname]}\ns_mov_b32 s{b+3}, 0x20000")
    p(f"""s_waitcnt lgkmcnt(0)
    s_or_b32 {sA}, s2, {sW}
    s_cbranch_scc1 L_notag
    s_or_b32 {sT0}, {sT0}, 1
    s_mul_i32 {sA}, {sT0}, 0x9e3779b1
    s_add_u32 {sT1}, {sT1}, {sA}
    v_mov_b32 v18, {sT0}
    v_mov_b32 v19, {sT1}
    s_mov_b64 exec, 1
    """)
    p(f"buffer_store_dwordx2 v[18:19], off, {sDBG}, 0 sc1", tag='untracked')
    p("s_mov_b64 exec, -1\nL_notag:")
    stamp('start')
    if o['clr_at'] == 'first':
        p(f"""s_lshl_b32 {sA}, {sRB}, 2
        s_add_u32 {sA}, {sA}, {sOM}
        s_mul_i32 {sA}, {sA}, {28*1024}
        s_add_u32 {sA}, {sA}, {WS_H}
        s_lshl_b32 {sB}, {sCB}, 10
        s_add_u32 {sB}, {sB}, {sA}
        s_lshl_b32 {sC}, {sCB}, 9
        s_add_u32 {sC}, {sC}, {sA}
        s_add_u32 {sC}, {sC}, {24*1024}
        v_mov_b32 v168, -1
        v_mov_b32 v169, -1
        v_mov_b32 v170, -1
        v_mov_b32 v171, -1""")
        for i in range(3):
            if i: p(f"s_add_u32 {sB}, {sB}, 8192")
            p(f"buffer_store_dwordx4 v[168:171], {vL16}, {sWS}, {sB} offen sc1", tag='clr')
        p("s_mov_b32 exec_hi, 0")
        p(f"buffer_store_dwordx4 v[168:171], {vL16}, {sWS}, {sC} offen sc1", tag='clr')
        p("s_mov_b64 exec, -1")
    def tlbw():
        sh = o['tlb_sh']
        if o['tlb_w0']: p(f"s_cmp_lg_u32 {sW}, 0\ns_cbranch_scc1 L_notlb")
        tg = 'untracked' if o['tlb_w0'] else 'tlb'
        if sh < 18:
            p(f"v_lshl_add_u32 v26, {sW}, 6, v0\nv_lshlrev_b32 v26, {sh}, v26", tag=tg)
        else:
            p(f"v_lshlrev_b32 v26, {sh}, v0\ns_mov_b64 exec, {hex((1 << (1 << (24 - sh))) - 1) if sh > 18 else -1}", tag=tg)
        for r_ in o['tlb_list']:
            p(f"buffer_load_dword v27, v26, {r_}, 0 offen offset:128 sc1", tag=tg)
        p("s_mov_b64 exec, -1", tag=tg)
        if o['tlb_w0']: p("L_notlb:")
    if o['tlbw'] == 1: tlbw()
    p(f"""
    s_lshl_b32 {sA}, {sW}, 7
    v_add_u32 v15, {sA}, {vQ}
    v_mul_u32_u24 v16, 3584, v15
    s_xor_b32 {sB}, {sCB}, {o['zx']}
    s_mul_i32 {sA}, {sB}, 224
    s_and_b32 {sB}, {sB}, 1
    s_mul_i32 {sWD}, {sB}, {384*o['zx']}
    s_add_u32 {sWD}, {sWD}, {1792 - 192*o['zx']}
    s_lshl_b32 {sC}, {sB}, 5
    s_sub_u32 {sA}, {sA}, {sC}
    s_add_u32 {sA}, {sA}, 1792
    s_and_b32 {sB}, {sW}, 1
    s_lshl_b32 {sB}, {sB}, 3
    v_lshl_add_u32 v14, {vQ}, 1, {sB}
    v_xor_b32 v14, v14, {vC}
    v_lshlrev_b32 v14, 4, v14
    v_add3_u32 {vWinSrc[0]}, v14, v16, {sA}
    v_add_u32 {vWinSrc[1]}, {4*3584-1024}, {vWinSrc[0]}
    v_add_u32 {vWinSrc[2]}, {4*3584-1024}, {vWinSrc[1]}
    v_add_u32 {vWinSrc[3]}, {4*3584-1024}, {vWinSrc[2]}
    """)
    for n in range(8):
        p(f"s_xor_b32 {sA}, {sROT}, {n}\ns_mul_i32 {sKC[n]}, {sA}, {16*3584}")
    if o['c0_early']: sforce('c', 'c0')
    for b in (12, 16, 48): p(f"s_sub_u32 s{b}, s{b}, 64\ns_subb_u32 s{b+1}, s{b+1}, 0")
    setup = lines(f"""
    ; z2n store voffset: (l>>5)*1024 + (2u+p)*256 + c*16, u=(q&1), p=rb&1
    v_lshrrev_b32 v14, 1, {vQ}
    v_lshlrev_b32 v14, 10, v14
    v_and_b32 v15, 1, {vQ}
    v_lshl_add_u32 v14, v15, 9, v14
    v_lshl_add_u32 v14, {vC}, 4, v14
    s_and_b32 {sA}, {sRB}, 1
    s_lshl_b32 {sA}, {sA}, 8
    v_add_u32 {vZst}, {sA}, v14
    s_lshl_b32 {sA}, {sCB}, 2
    s_add_u32 {sA}, {sA}, {sW}
    s_lshl_b32 {sZB}, {sA}, 17
    s_lshl_b32 {sZF}, {sA}, 8
    s_add_u32 {sZF}, {sZF}, {WS_FC}
    s_lshr_b32 {sA}, {sRB}, 1
    s_lshl_b32 {sA}, {sA}, 11
    s_add_u32 {sZST}, {sZB}, {sA}
    s_xor_b32 {sZST}, {sZST}, {o['zx'] << 19}
    s_lshl_b32 {sA}, {sRB}, 2
    s_add_u32 {sA}, {sA}, {sOM}
    s_mul_i32 {sA}, {sA}, {28*1024}
    s_add_u32 {sA}, {sA}, {WS_H}
    s_lshl_b32 {sB}, {sCB}, 10
    s_add_u32 {sHST}, {sA}, {sB}
    s_lshl_b32 {sB}, {sCB}, 9
    s_add_u32 {sHS1}, {sA}, {sB}
    s_add_u32 {sHS1}, {sHS1}, {24*1024}
    s_mov_b32 s66, -1
    s_mov_b32 s67, 0
    """)
    for l in setup: p(l)

    def z2n_stores(base, tag, which=range(4)):
        for i in which:
            if i: p(f"s_add_u32 {sZST}, {sZST}, 32768")
            if i == 3: p(f"s_mov_b64 exec, {sLO32}")
            p(f"buffer_store_dwordx4 {vr(base(i))}, {vZst}, {sWS}, {sZST} offen sc1", tag=tag)
            if i == 3: p("s_mov_b64 exec, -1")
    def h_store(i, reg, tag):
        if i < 3:
            p(f"s_add_u32 {sA}, {sHST}, {8192*i}")
            p(f"buffer_store_dwordx4 {vr(reg)}, {vL16}, {sWS}, {sA} offen sc1", tag=tag)
        else:
            p(f"s_mov_b64 exec, {sLO32}")
            p(f"buffer_store_dwordx4 {vr(reg)}, {vL16}, {sWS}, {sHS1} offen sc1", tag=tag)
            p("s_mov_b64 exec, -1")

    setup2 = lines(f"""
    v_lshrrev_b32 v14, 2, {vC}
    v_lshl_add_u32 v15, {vQ}, 4, v14
    v_lshlrev_b32 v15, 8, v15
    v_and_b32 v16, 3, {vC}
    v_lshl_add_u32 v15, v16, 3, v15
    v_and_b32 v16, 1, {vQ}
    v_lshl_add_u32 v16, v16, 2, v14
    s_and_b32 {sB}, {sCB}, 1
    s_and_b32 {sC}, {sW}, 1
    s_mul_i32 {sA}, {sC}, 6
    s_add_u32 {sA}, {sA}, {sB}
    s_lshl_b32 {sC}, {sC}, 1
    s_sub_u32 {sC}, 1, {sC}
    s_lshl_b32 {sB}, {sB}, 1
    s_sub_u32 {sB}, 1, {sB}
    s_mul_i32 {sB}, {sB}, {o['zx']}
    """)
    for j in range(4):
        if j: setup2.append(f"s_add_u32 {sA}, {sA}, {sC}")
        setup2 += lines(f"""v_xor_b32 v17, {sA}, v16
        v_lshl_add_u32 {vWinRd[j]}, v17, 5, v15
        s_add_u32 s4, {sA}, {sB}
        v_xor_b32 v17, s4, v16
        v_lshl_add_u32 {vWinRd2[j]}, v17, 5, v15""")
    setup2 += lines(f"""
    v_mul_u32_u24 v14, 1040, {vC}
    v_lshl_add_u32 {vWdRd}, {vQ}, 8, v14
    s_mul_i32 {sA}, {sW}, {SL}
    v_add_u32 {vXrd1}, {sA}, {vWdRd}
    s_xor_b32 {sB}, {sW}, 1
    s_mul_i32 {sA}, {sB}, {SL}
    v_add_u32 {vXrd1p}, {sA}, {vWdRd}
    s_mul_i32 {sA}, {sB}, 3072
    s_add_u32 {sA}, {sA}, {VASM}
    v_add_u32 {vExW}, {sA}, {vL16}
    s_mul_i32 {sA}, {sW}, 3072
    s_add_u32 {sA}, {sA}, {VASM}
    v_add_u32 {vExR}, {sA}, {vL16}
    v_mul_u32_u24 v14, {4*1040}, {vC}
    v_lshrrev_b32 v15, 2, {vC}
    v_lshl_add_u32 v14, v15, 4, v14
    v_lshl_add_u32 v14, {vQ}, 8, v14
    s_mul_i32 {sA}, {sOM}, 1040
    v_add_u32 {vXrd2}, {sA}, v14
    s_xor_b32 {sB}, {sOM}, 1
    s_mul_i32 {sA}, {sB}, 1040
    v_add_u32 {vXrd2p}, {sA}, v14
    """)
    for l in setup2: p(l)
    setup3 = lines(f"""
    s_lshl_b32 {sWDO}, {o['fcb'] if o.get('fcb') is not None else sCB}, 15
    s_add_u32 {sWDO}, {sWDO}, {sW4K}
    v_cmp_gt_u32 vcc, 32, v0
    v_mov_b32 v14, s16
    v_mov_b32 v15, s12
    v_cndmask_b32 v14, v14, v15, vcc
    v_mov_b32 v16, s17
    v_mov_b32 v15, s13
    v_cndmask_b32 v16, v16, v15, vcc
    v_subrev_u32 v15, 64, {vRow[0]}
    v_and_b32 v15, 511, v15
    v_add3_u32 v15, v15, 64, {sWDO}
    v_add_co_u32 v{vWdA}, vcc, v14, v15
    v_addc_co_u32 v{vWdA+1}, vcc, 0, v16, vcc
    v_and_b32 v14, 1, {vC}
    v_cmp_eq_u32 vcc, 1, v14
    v_and_b32 v14, 1, {vQ}
    v_cndmask_b32 v15, v14, {vQ}, vcc
    v_add_u32 v14, 2, v14
    v_add_u32 v16, {vQ}, {vC}
    v_and_b32 v16, 3, v16
    v_cndmask_b32 v14, v14, v16, vcc
    v_mul_u32_u24 v16, 1040, {vC}
    v_lshl_add_u32 {vWdRd}, v15, 8, v16
    v_lshl_add_u32 {vWdRdS}, v14, 8, v16
    s_lshl_b32 {sA}, {sW}, 2
    v_add_u32 v15, {sA}, {vQ}
    v_mul_u32_u24 v15, {VT1}, v15
    v_lshl_add_u32 {vVad[0]}, {vC}, 4, v15""")
    setup3 += lines(f"""
    s_mov_b32 {sA}, {GATE}
    v_lshl_add_u32 {vGateRd}, {vQ}, 8, {sA}
    v_lshrrev_b32 v15, 5, v0
    v_bfe_u32 v16, v0, 3, 2
    v_xor_b32 v16, v16, v15
    v_lshlrev_b32 v16, 8, v16
    v_lshl_add_u32 v16, v15, 19, v16
    s_and_b32 {sA}, {sROT2}, 7
    v_and_b32 v14, 7, v0
    v_xor_b32 v14, {sA}, v14
    v_lshl_add_u32 v14, v14, 4, v16
    v_add_u32 {vWspSrc[0]}, {sW1K}, v14
    v_add_u32 {vWspSrc[1]}, {2*524288-1040}, {vWspSrc[0]}
    v_add_u32 {vWspSrc[2]}, {2*524288-1040}, {vWspSrc[1]}
    v_add_u32 {vWspSrc[3]}, {2*524288-1040}, {vWspSrc[2]}
    s_lshl_b32 {sA}, {'0' if o.get('frb') else sRB}, 2
    s_add_u32 {sA}, {sA}, {sOM}
    s_lshl_b32 {sWSB}, {sA}, 12
    s_lshr_b32 {sA}, {sROT2}, 3
    s_lshl_b32 {sA}, {sA}, 7
    s_add_u32 {sWSB}, {sWSB}, {sA}
    s_and_b32 {sA}, {sCB}, {o['hm']}
    s_lshl_b32 {sB}, {sA}, 22
    s_add_u32 {sWSB}, {sWSB}, {sB}
    s_mul_i32 {sB}, {sA}, {4*1040}
    s_mul_i32 {sC}, {sW}, {SL}
    s_add_u32 {sWSM[0]}, {sC}, {sB}
    s_sub_u32 {sWSM[1]}, {sC}, {sB}
    s_add_u32 {sWSM[1]}, {sWSM[1]}, {4*1040}
    v_lshrrev_b32 v14, 1, {vC}
    v_mul_u32_u24 v14, 1040, v14
    v_and_b32 v15, 1, {vC}
    v_lshl_add_u32 v14, v15, 9, v14
    v_lshrrev_b32 v16, 1, {vQ}
    v_xor_b32 v16, v16, v15
    v_lshl_add_u32 v14, v16, 7, v14
    v_and_b32 v15, 1, {vQ}
    v_lshl_add_u32 v14, v15, 3, v14
    v_add_u32 {vWspRd}, {sC}, v14
    v_and_b32 v14, 1, {vC}
    v_cmp_ne_u32 {sM1}, 0, v14
    v_and_b32 v14, 2, {vC}
    v_cmp_ne_u32 {sM2}, 0, v14
    v_cmp_gt_u32 {sLT4}, 4, {vC}
    v_cmp_eq_u32 {sC0}, 0, {vC}
    v_and_b32 v17, 3, {vC}
    v_lshl_add_u32 v17, {vQ}, 2, v17
    v_lshlrev_b32 {vSt0}, 4, v17
    s_lshl_b32 {sA}, {sRB}, 13
    s_lshl_b32 {sB}, {sW}, 8
    s_add_u32 {sF}, {sA}, {sB}
    s_add_u32 {sF}, {sF}, {WS_ST}
    """)
    coefc = [f"v_lshlrev_b32 v14, 2, {vQ}"]
    for k in range(4):
        coefc += lines(f"""v_add_u32 v15, {k}, v14
        v_mul_u32_u24 v15, v15, {vC}
        v_and_b32 v15, 15, v15
        v_cvt_f32_u32 v15, v15
        v_mul_f32 v15, {fh(1.0/16)}, v15
        v_cos_f32 v{PK+k}, v15
        v_sin_f32 v{PK+4+k}, v15""")
    coefc += lines(f"""v_cvt_pk_bf16_f32 v{COEF}, v{PK}, v{PK+1}
    v_cvt_pk_bf16_f32 v{COEF+1}, v{PK+2}, v{PK+3}
    v_cvt_pk_bf16_f32 v{COEF+2}, v{PK+4}, v{PK+5}
    v_cvt_pk_bf16_f32 v{COEF+3}, v{PK+6}, v{PK+7}
    v_xor_b32 v{COEF+4}, 0x80008000, v{COEF+2}
    v_xor_b32 v{COEF+5}, 0x80008000, v{COEF+3}
    v_mov_b32 v{COEF+6}, v{COEF}
    v_mov_b32 v{COEF+7}, v{COEF+1}
    v_mov_b32 v{COEF+8}, v{COEF}
    v_mov_b32 v{COEF+9}, v{COEF+1}
    v_mov_b32 v{COEF+10}, v{COEF+4}
    v_mov_b32 v{COEF+11}, v{COEF+5}
    v_mov_b32 v{COEF+12}, v{COEF+4}
    v_mov_b32 v{COEF+13}, v{COEF+5}
    v_xor_b32 v{COEF+14}, 0x80008000, v{COEF}
    v_xor_b32 v{COEF+15}, 0x80008000, v{COEF+1}""")
    ffill = lines(f"""s_lshl_b32 {sA}, {sW}, 5
    s_add_u32 {sA}, {sA}, {sRB}
    s_xor_b32 {sB}, {sA}, 32
    s_cmp_lt_u32 {sCB}, 4
    s_cselect_b32 s4, 0, 0x80000000
    s_and_b32 {sC}, {sW}, 1
    s_lshl_b32 {sC}, {sC}, 6
    v_lshl_add_u32 v164, {vQ}, 2, {sC}
    v_cvt_f32_u32 v164, v164""")
    for u in range(2):
        ffill += lines(f"""v_lshl_add_u32 v165, {vC}, 7, {[sA, sB][u]}
        v_cvt_f32_u32 v165, v165
        v_mul_f32 v165, {fh(1.0/2048)}, v165
        v_xor_b32 v165, s4, v165
        v_mul_f32 v166, v164, v165""")
        for kl in range(4):
            d = FF + 16 * u + 4 * kl
            for i in range(4): ffill.append(f"v_fmamk_f32 v{168+i}, v165, {fh(float(16*kl+i))}, v166")
            for i in range(4): ffill += [f"v_cos_f32 v{d+i}, v{168+i}", f"v_sin_f32 v{168+i}, v{168+i}"]
            for i in range(4): ffill.append(f"v_cvt_pk_bf16_f32 v{d+i}, v{d+i}, v{168+i}")
    for l in setup3 + coefc + (ffill if o['f_where'] == 0 else []): p(l)
    sforce('x', 'x')
    sforce('c', f"c{o['pre_c']}")
    if o['tlbw'] == 2: tlbw()
    p(f"s_mov_b32 m0, {GATE}")
    dma(vRow[0], sGATE, '0', 'gate')
    p("s_mov_b32 s50, 16384")
    def clears():
        for i in range(4): p(f"v_mov_b32 v{FLG+4+i}, -1")
        for i in range(4): h_store(i, FLG + 4, 'clr')
    if o['clr_at'] == 'start': clears()
    if isinstance(o['clr_at'], list):
        for i in range(4): p(f"v_mov_b32 v{232+i}, -1")
    if o['f_where'] == 1:
        for l in ffill: p(l)

    p.wait_vm('x')
    p.now = 0.0; sch['pipe'] = 400.0; landed['c0'] = 0; landed['c1'] = 400; sch['hold'] = o['hold']
    barrier()
    stamp('x_in')
    sforce('c', 'c2')
    xset2 = []
    for n in range(16):
        xset2 += [f"ds_read_b128 {ar(XF1+4*n)}, {vXrd1} offset:{16*n}", f"ds_read_b128 {ar(XF1P+4*n)}, {vXrd1p} offset:{16*n}"]
    for l in xset2[:4]: p(l, tag='x2')
    del xset2[:4]
    for n in range(16):
        xset2 += [f"ds_read_b128 {ar(XF2+4*n)}, {vXrd2} offset:{16*n}", f"ds_read_b128 {ar(XF2P+4*n)}, {vXrd2p} offset:{16*n}"]

    adj = {'win': 0, 'win2': 0, 'wd': 0}
    def zone(kind, regs, slot):
        want = RING + ((slot - RING) // (3 * SL)) * 3 * SL
        if want != adj[kind]:
            d = want - adj[kind]
            for r in regs:
                p(f"v_add_u32 {r}, {d}, {r}" if d > 0 else f"v_subrev_u32 {r}, {-d}, {r}")
            adj[kind] = want
        return slot - want
    def win_reads(n, ks, fb):
        slot = slot_base(f'c{n}')
        r = []
        if n < 16:
            wr = vWinRd2 if n < 8 else vWinRd
            off = zone('win2' if n < 8 else 'win', wr, slot)
            for j in range(4):
                for h in range(2):
                    r.append(f"ds_read_b64_tr_b16 {vr(fb+4*j+2*h,2)}, {wr[j]} offset:{off + ks*2048 + h*1024}")
        else:
            off = zone('wd', [vWdRd, vWdRdS], slot)
            for j in range(4):
                r.append(f"ds_read_b128 {vr(fb+4*j)}, {vWdRdS if j & 1 else vWdRd} offset:{off + 16*(2*ks+(j>>1))}")
            r.append(f"ds_read_b128 {vr(fb+16)}, {vGateRd} offset:{16*(8*(n-16)+ks)}")
        return r
    def win_mfma(n, ks, fb):
        r = []
        first = ks == 0 and n in (0, 8, 16)
        def c(reg): return '0' if first else vr(reg)
        if n < 16:
            i_ = 4 * (2 * (n & 7) + ks)
            Z = Z2 if n < 8 else Z1
            for j in range(4):
                for xb, a_ in (((XF1 if n < 8 else XF2), Z + 4 * j), ((XF1P if n < 8 else XF2P), Z + 4 * (6 - j))):
                    if j == 3 and xb in (XF1P, XF2P): continue
                    ops = (ar(xb + i_), vr(fb + 4 * j)) if n < 8 else (vr(fb + 4 * j), ar(xb + i_))
                    r.append(f"v_mfma_f32_16x16x32_bf16 {vr(a_)}, {ops[0]}, {ops[1]}, {c(a_)}")
        else:
            for j in range(4):
                acc = ACA + 4 * (n - 16) + 8 * (j & 1)
                r.append(f"v_mfma_f32_16x16x32_bf16 {vr(acc)}, {ar(XF2+4*(2*ks+(j>>1)))}, {vr(fb+4*j)}, {'0' if ks == 0 and j < 2 else vr(acc)}")
            r.insert(2, f"v_mfma_f32_16x16x32_bf16 {vr(ACA+16)}, {vr(fb+16)}, {ar(XF2+4*(8*(n-16)+ks))}, {c(ACA+16)}")
        return r

    def sync_chunk(n, hooks):
        it = f'c{n}'
        sforce('c', it)
        if ('pre', n) in hooks: hooks[('pre', n)]()
        swait(it)
        sch['need'] = n + 1
        if n == 16:
            p(f"""s_or_b32 {sA}, {sW}, {sCB}
            s_cbranch_scc1 L_nopatch
            v_mov_b32 v168, 0xbf803f80
            v_mov_b32 v169, v168
            v_mov_b32 v170, v168
            v_mov_b32 v171, v168
            v_add_u32 v167, {slot_base(it) + 512}, {vL16}
            s_mov_b64 exec, {sLO32}
            ds_write_b128 v167, v[168:171]
            s_mov_b64 exec, -1
            s_waitcnt lgkmcnt(0)
            L_nopatch:""", tag='untracked')
        barrier()
        if ('post', n) in hooks: hooks[('post', n)]()
    pf = []; pfc = [0.0]
    def flush_pf():
        while pf:
            x = pf.pop(0)
            x() if callable(x) else fg([x])
    def pipeline(chunks, hooks):
        S = [(n, ks) for n in chunks for ks in range(2 if n < 16 else 8)]
        def fbuf(i): return (FB if S[i][0] < 16 else FBA)[i % 3]
        for j in range(2):
            if S[j][1] == 0: sync_chunk(S[j][0], hooks)
            for l in win_reads(S[j][0], S[j][1], fbuf(j)): p(l, tag=S[j]); tick()
        for i, (n, ks) in enumerate(S):
            nks = 2 if n < 16 else 8
            if (n, ks) == (15, 0): flush_pf()
            p.wait_lg(S[i])
            if ks == nks - 1: pend.add(f'c{n}')
            if not xset2 and 'x' not in freed and p.lg_complete('x2'): pend.add('x')
            rd = []
            if i + 2 < len(S):
                if S[i+2][1] == 0: sync_chunk(S[i+2][0], hooks)
                rd = [(l, S[i+2]) for l in win_reads(S[i+2][0], S[i+2][1], fbuf(i + 2))]
            if xset2:
                k2 = o['xrate']
                rd = [(l, 'x2') for l in xset2[:k2]] + rd; del xset2[:k2]
            ms = win_mfma(n, ks, fbuf(i))
            per = (len(rd) + len(ms) - 1) // len(ms)
            for j, m in enumerate(ms):
                t0 = p.now
                p(m)
                nr = 0
                for _ in range(per):
                    if rd:
                        l, t = rd.pop(0); p(l, tag=t); nr += 1
                t1 = p.now
                pfc[0] += o['pf_rate'][n >= 16]
                while pf and pfc[0] >= 1:
                    x = pf.pop(0); pfc[0] -= 1
                    x() if callable(x) else p(x)
                if not pf: pfc[0] = 0
                p.now = t0 + max(t1 - t0, 8 + 5 * nr + (p.now - t1), 16)
                tick()
            if ('step', n, ks) in hooks: hooks[('step', n, ks)]()
            if ks == nks - 1 and ('done', n) in hooks: hooks[('done', n)]()

    def exch_write(Z):
        for i in range(3): p(f"ds_write_b128 {vExW}, {vr(Z+16+4*i)} offset:{1024*i}")
        p("s_waitcnt lgkmcnt(0)")
    def exch_read(Z, lab):
        for i in range(3): p(f"ds_read_b128 {vr(Z+16+4*i)}, {vExR} offset:{1024*i}", tag=lab)
    def exch_fix(Z, lab):
        p.wait_lg(lab)
        p(f"s_bitcmp0_b32 {sW}, 0\ns_cbranch_scc1 {lab}")
        for j in range(3):
            for i in range(4): p(f"v_swap_b32 v{Z+4*j+i}, v{Z+4*(6-j)+i}", tag='untracked')
        p(f"{lab}:")
    C0 = -2.0 * math.sqrt(2.0 / math.pi) * math.log2(math.e)
    C1 = C0 * 0.044715
    def gelu(base, n, scalar=False):
        if scalar:
            r = [f"s_mov_b32 s4, {fh(C1)}", f"v_mov_b32 v22, {fh(C0)}"]
            for g in range(0, n, 4):
                for i in range(4): r.append(f"v_mul_f32 v{14+i}, v{base+g+i}, v{base+g+i}")
                for i in range(4): r.append(f"v_fma_f32 v{14+i}, v{14+i}, s4, v22")
                for i in range(4): r.append(f"v_mul_f32 v{14+i}, v{14+i}, v{base+g+i}")
                for i in range(4): r.append(f"v_exp_f32 v{14+i}, v{14+i}")
                for i in range(4): r.append(f"v_add_f32 v{14+i}, 1.0, v{14+i}")
                for i in range(4): r.append(f"v_rcp_f32 v{14+i}, v{14+i}")
                for i in range(4): r.append(f"v_mul_f32 v{base+g+i}, v{base+g+i}, v{14+i}")
            return r
        r = lines(f"""s_mov_b32 s4, {fh(C1)}
        s_mov_b32 s5, {fh(C1)}
        v_mov_b32 v22, {fh(C0)}
        v_mov_b32 v23, {fh(C0)}""")
        for g in range(0, n, 4):
            x = [vr(base+g, 2), vr(base+g+2, 2)]; t = [vr(14, 2), vr(16, 2)]
            for i in range(2): r.append(f"v_pk_mul_f32 {t[i]}, {x[i]}, {x[i]}")
            for i in range(2): r.append(f"v_pk_fma_f32 {t[i]}, {t[i]}, s[4:5], v[22:23]")
            for i in range(2): r.append(f"v_pk_mul_f32 {t[i]}, {t[i]}, {x[i]}")
            for i in range(4): r.append(f"v_exp_f32 v{14+i}, v{14+i}")
            for i in range(2): r.append(f"v_pk_add_f32 {t[i]}, {t[i]}, 1.0 op_sel_hi:[1,0]")
            for i in range(4): r.append(f"v_rcp_f32 v{14+i}, v{14+i}")
            for i in range(2): r.append(f"v_pk_mul_f32 {x[i]}, {x[i]}, {t[i]}")
        return r
    def rowred(regs, rors):
        return [f"v_add_f32_dpp {r}, {r}, {r} row_ror:{k} row_mask:0xf bank_mask:0xf" for k in rors for r in regs]

    def get_tag():
        p.wait_vm('tag')
        p(f"""s_mov_b32 {sCNT}, 0
        L_tag:
        v_readfirstlane_b32 {sT0}, v{vTag}
        v_readfirstlane_b32 {sT1}, v{vTag+1}
        s_cmp_lg_u32 {sT0}, 0
        s_cbranch_scc1 L_tagok
        s_add_u32 {sCNT}, {sCNT}, 1
        s_cmp_ge_u32 {sCNT}, {SPIN_LIMIT}
        s_cbranch_scc1 L_tagok""")
        p(f"buffer_load_dwordx2 {vr(vTag,2)}, off, {sDBG}, 0 sc1", tag='untracked')
        p("""s_waitcnt vmcnt(0)
        s_branch L_tag
        L_tagok:""")
    def flag_store(base):
        p(f"""s_lshl_b32 {sA}, s2, 3
        s_add_u32 {sA}, {sA}, {base}
        s_cmp_eq_u32 {sW}, 0
        s_cselect_b32 {sA}, {sA}, {WS_SIZE}
        v_mov_b32 v18, {sT0}
        v_mov_b32 v19, {sT1}
        s_mov_b64 exec, 1""")
        p(f"buffer_store_dwordx2 v[18:19], off, {sWS}, {sA} sc1", tag='flag')
        p("s_mov_b64 exec, -1")
    def flag_issue(base, r, tag):
        p(f"s_mov_b32 {sA}, {base}")
        p(f"buffer_load_dwordx4 {vr(r)}, {vL16}, {sWS}, {sA} offen sc1", tag=tag)
        p(f"buffer_load_dwordx4 {vr(r+4)}, {vL16}, {sWS}, {sA} offen offset:1024 sc1", tag=tag)
    def flag_ops(r):
        ops = [f"v_xor_b32 v{r+i}, {sT0 if i % 2 == 0 else sT1}, v{r+i}" for i in range(8)]
        ops += [f"v_or3_b32 v{r}, v{r}, v{r+1}, v{r+2}", f"v_or3_b32 v{r+3}, v{r+3}, v{r+4}, v{r+5}",
                f"v_or3_b32 v{r}, v{r}, v{r+6}, v{r+7}", f"v_or_b32 v{r}, v{r}, v{r+3}", f"v_cmp_ne_u32 vcc, 0, v{r}"]
        return ops
    def flag_check(base, r, tag):
        lab = f"L_fw{base:x}"
        p.wait_vm(tag)
        p(f"s_mov_b32 {sCNT}, 0\n{lab}:")
        for l in flag_ops(r): p(l)
        p(f"""s_cbranch_vccz {lab}_ok
        s_add_u32 {sCNT}, {sCNT}, 1
        s_cmp_ge_u32 {sCNT}, {SPIN_LIMIT}
        s_cbranch_scc1 {lab}_ok""")
        flag_issue(base, r, 'untracked')
        p(f"s_waitcnt vmcnt(0)\ns_branch {lab}\n{lab}_ok:")

    def pack_tiles(src, swap_pairs):
        r = []
        for ft in range(7):
            r.append(f"v_cvt_pk_bf16_f32 v{PK+2*ft}, v{src+4*ft}, v{src+4*ft+1}")
            r.append(f"v_cvt_pk_bf16_f32 v{PK+2*ft+1}, v{src+4*ft+2}, v{src+4*ft+3}")
        if not swap_pairs:
            for i in range(14): r.append(f"v_min_u32 v{PK+i}, -2, v{PK+i}")
        r += [f"v_mov_b32 v{PK+14}, v{PK+12}", f"v_mov_b32 v{PK+15}, v{PK+13}"]
        for pr in (range(4) if swap_pairs else [3]):
            r.append(f"v_permlane32_swap_b32 v{PK+4*pr}, v{PK+4*pr+2}")
            r.append(f"v_permlane32_swap_b32 v{PK+4*pr+1}, v{PK+4*pr+3}")
        return r

    hk = {('post', o['tag_at']): lambda: p(f"buffer_load_dwordx2 {vr(vTag,2)}, off, {sDBG}, 0 sc1", tag='tag')}
    if o.get('fine'):
        stamp('xrd')
        for n in range(7): hk[('done', n)] = (lambda n=n: stamp(f'c{n}'))
    if isinstance(o['clr_at'], list):
        for i_, n_ in enumerate(o['clr_at']):
            if n_ < 8: hk[('done', n_)] = (lambda i_=i_: h_store(i_, 232, 'clr'))
    if o['hfine'] > 1: hk[('done', 3)] = lambda: sch.update(hmax=1)
    pipeline(range(8), hk)
    sch['hmax'] = 4; sch['hold'] = o['hold'] > 1
    exch_write(Z2)
    barrier()
    exch_read(Z2, 'L_ex2')
    stamp('z2_mfma')
    get_tag()
    if o['clr_at'] == 'gelu': clears()
    g_ = gelu(Z2, 28)
    fg(g_[:4+18*4])
    p.wait_lg('L_ex2')
    fg(g_[4+18*4:])
    exch_fix(Z2, 'L_ex2')
    S2 = [vr(14, 2), vr(16, 2)]
    st = []
    if o['stat1']:
        M2_ = [vr(MEANI, 2), vr(MEANI + 2, 2)]
        for h in range(2): st.append(f"v_pk_add_f32 {M2_[h]}, {vr(Z2+2*h,2)}, {vr(Z2+4+2*h,2)}")
        for h in range(2): st.append(f"v_pk_mul_f32 {S2[h]}, {vr(Z2+2*h,2)}, {vr(Z2+2*h,2)}")
        for ft in range(1, 7):
            if ft > 1:
                for h in range(2): st.append(f"v_pk_add_f32 {M2_[h]}, {M2_[h]}, {vr(Z2+4*ft+2*h,2)}")
            for h in range(2): st.append(f"v_pk_fma_f32 {S2[h]}, {vr(Z2+4*ft+2*h,2)}, {vr(Z2+4*ft+2*h,2)}, {S2[h]}")
        st += rowred([f'v{MEANI+r}' for r in range(4)] + [f'v{14+r}' for r in range(4)], [8, 4, 2, 1])
    else:
        for h in range(2): st.append(f"v_pk_add_f32 {S2[h]}, {vr(Z2+2*h,2)}, {vr(Z2+4+2*h,2)}")
        for ft in range(2, 7):
            for h in range(2): st.append(f"v_pk_add_f32 {S2[h]}, {S2[h]}, {vr(Z2+4*ft+2*h,2)}")
        S = [f'v{14+r}' for r in range(4)]
        st += rowred(S, [8, 4, 2, 1])
        for r in range(4): st.append(f"v_mul_f32 v{MEANI+r}, {fh(1.0/112)}, {S[r]}")
        for ft in range(7):
            for h in range(2): st.append(f"v_pk_add_f32 {vr(Z2+4*ft+2*h,2)}, {vr(Z2+4*ft+2*h,2)}, {vr(MEANI+2*h,2)} neg_lo:[0,1] neg_hi:[0,1]")
        for h in range(2): st.append(f"v_pk_mul_f32 {S2[h]}, {vr(Z2+2*h,2)}, {vr(Z2+2*h,2)}")
        for ft in range(1, 7):
            for h in range(2): st.append(f"v_pk_fma_f32 {S2[h]}, {vr(Z2+4*ft+2*h,2)}, {vr(Z2+4*ft+2*h,2)}, {S2[h]}")
        st += rowred(S, [8, 4, 2, 1])
    st += lines(f"""
    v_cndmask_b32 v18, v{MEANI}, v{MEANI+1}, {sM1}
    v_cndmask_b32 v19, v{MEANI+2}, v{MEANI+3}, {sM1}
    v_cndmask_b32 v24, v18, v19, {sM2}
    v_cndmask_b32 v18, v14, v15, {sM1}
    v_cndmask_b32 v19, v16, v17, {sM1}
    v_cndmask_b32 v26, v18, v19, {sM2}
    v_mov_b32 v25, {sT0}
    v_mov_b32 v27, {sT1}
    s_lshl_b32 {sB}, {sCB}, 10
    s_add_u32 {sA}, {sF}, {sB}
    """)
    fg(st)
    p(f"s_mov_b64 exec, {sLT4}")
    p(f"buffer_store_dwordx4 v[24:27], {vSt0}, {sWS}, {sA} offen sc1", tag='st')
    p(f"""s_mov_b64 exec, -1
    v_lshrrev_b32 v18, 2, {vC}
    v_lshl_add_u32 {vSt0}, v18, 10, {vSt0}
    v_add_u32 {vSt1}, 4096, {vSt0}""")
    p(f"""s_lshl_b32 {sA}, {sRB}, 2
    s_add_u32 {sA}, {sA}, {sOM}
    s_lshl_b32 {sA}, {sA}, 1
    v_lshlrev_b32 v14, 8, {vC}""")
    p(f"buffer_load_ushort {vBsp}, v14, {sBSP}, {sA} offen", tag='bsp')
    if o['t_wo']:
        p(f"""s_lshr_b32 {sA}, s2, 3
        s_lshl_b32 {sA}, {sA}, 2
        s_add_u32 {sA}, {sA}, {sW}
        s_mul_i32 {sA}, {sA}, 7168
        s_and_b32 {sB}, s2, 1
        s_lshl_b32 {sB}, {sB}, 9
        s_add_u32 {sA}, {sA}, {sB}
        v_lshrrev_b32 v14, 2, v0
        v_lshlrev_b32 v14, 10, v14
        v_and_b32 v15, 3, v0
        v_lshl_add_u32 v14, v15, 7, v14
        s_mov_b64 exec, 0xfffffff""")
        p(f"buffer_load_dword v27, v14, {sWOUT}, {sA} offen", tag='touch')
        p("s_mov_b64 exec, -1")
    if o['clr_at'] == 'stats': clears()
    stamp('stats_pub')

    def stat_issue(tag):
        p(f"buffer_load_dwordx4 {vr(FLG)}, {vSt0}, {sWS}, {sF} offen sc1", tag=tag)
        p(f"buffer_load_dwordx4 {vr(FLG+4)}, {vSt1}, {sWS}, {sF} offen sc1", tag=tag)
    def normalize_publish():
        p.wait_vm('stl')
        F = FLG
        p(f"""s_mov_b32 {sCNT}, 0
        L_stat:
        v_xor_b32 v24, {sT0}, v{F+1}
        v_xor_b32 v25, {sT1}, v{F+3}
        v_xor_b32 v26, {sT0}, v{F+5}
        v_xor_b32 v27, {sT1}, v{F+7}
        v_or3_b32 v24, v24, v25, v26
        v_or_b32 v24, v24, v27
        v_cmp_ne_u32 vcc, 0, v24
        s_cbranch_vccz L_statok
        s_add_u32 {sCNT}, {sCNT}, 1
        s_cmp_ge_u32 {sCNT}, {SPIN_LIMIT}
        s_cbranch_scc1 L_statok""")
        stat_issue('untracked')
        p("s_waitcnt vmcnt(0)\ns_branch L_stat\nL_statok:")
        stamp('stats_in')
        if o['stat1']:
            r = [f"v_add_f32 v24, v{F}, v{F+4}", f"v_add_f32 v17, v{F+2}, v{F+6}"] + rowred(['v24', 'v17'], [4, 8])
            r += lines(f"""v_mul_f32 v24, {fh(1.0/896)}, v24
            v_mul_f32 v17, {fh(1.0/896)}, v17
            v_fma_f32 v17, -v24, v24, v17
            v_max_f32 v17, 0, v17
            v_add_f32 v17, {fh(1e-5)}, v17
            v_rsq_f32 v25, v17
            v_mul_f32 v24, -v24, v25""".replace('v_mul_f32 v24, -v24, v25', 'v_mul_f32_e64 v24, -v24, v25'))
            for i in range(4):
                r.append(f"v_mov_b32_dpp v{14+i}, v25 quad_perm:[{i},{i},{i},{i}] row_mask:0xf bank_mask:0xf")
            for i in range(4):
                r.append(f"v_mov_b32_dpp v{18+i}, v24 quad_perm:[{i},{i},{i},{i}] row_mask:0xf bank_mask:0xf")
        else:
            r = [f"v_add_f32 v24, v{F}, v{F+4}"] + rowred(['v24'], [4, 8])
            r += lines(f"""v_mul_f32 v24, {fh(0.125)}, v24
        v_sub_f32 v16, v{F}, v24
        v_sub_f32 v20, v{F+4}, v24
        v_mul_f32 v16, v16, v16
        v_fmac_f32 v16, v20, v20
        v_add_f32 v17, v{F+2}, v{F+6}
        v_fmac_f32 v17, {fh(112.0)}, v16""")
            r += rowred(['v17'], [4, 8])
            r += lines(f"""v_mov_b32 v18, {fh(1e-5)}
        v_fmac_f32 v18, {fh(1.0/896)}, v17
        v_rsq_f32 v25, v18""")
            for i in range(4):
                r.append(f"v_mov_b32_dpp v{18+i}, v24 quad_perm:[{i},{i},{i},{i}] row_mask:0xf bank_mask:0xf")
            for i in range(4):
                r.append(f"v_mov_b32_dpp v{14+i}, v25 quad_perm:[{i},{i},{i},{i}] row_mask:0xf bank_mask:0xf")
            for h in range(2): r.append(f"v_pk_add_f32 {vr(18+2*h,2)}, {vr(MEANI+2*h,2)}, {vr(18+2*h,2)} neg_lo:[0,1] neg_hi:[0,1]")
            for h in range(2): r.append(f"v_pk_mul_f32 {vr(18+2*h,2)}, {vr(18+2*h,2)}, {vr(14+2*h,2)}")
        for ft in range(7):
            for h in range(2): r.append(f"v_pk_fma_f32 {vr(Z2+4*ft+2*h,2)}, {vr(Z2+4*ft+2*h,2)}, {vr(14+2*h,2)}, {vr(18+2*h,2)}")
        r += pack_tiles(Z2, True)
        pf.extend(r)
        if not o['norm_fill']: flush_pf()
        for i_ in range(4):
            pf.append(lambda i_=i_: z2n_stores(lambda i: PK + 4 * i, 'z2n', [i_]))
            if i_ < 3: pf.extend([lambda: None] * o['zst_gap'])
        pf.append(lambda: stamp('z2n_pub'))
        if not o['zst_gap']: flush_pf()

    sch['hold'] = False
    hooks = {('post', o['poll_after']): lambda: stat_issue('stl'), ('done', o['poll_after']): normalize_publish}
    def zflag_store():
        assert p.vm.count('z2n') == 4
        p.wait_vm('z2n')
        p(f"""s_lshl_b32 {sA}, {sRB}, 3
        s_add_u32 {sA}, {sA}, {sZF}
        s_xor_b32 {sA}, {sA}, {o['zx'] << 10}
        v_mov_b32 v168, {sT0}
        v_mov_b32 v169, {sT1}
        s_mov_b64 exec, 1""")
        p(f"buffer_store_dwordx2 v[168:169], off, {sWS}, {sA} sc1", tag='flag')
        p("s_mov_b64 exec, -1")
    def zflag_issue(tag):
        p(f"buffer_load_dwordx2 {vr(FLG,2)}, v{FLG+2}, {sWS}, {sZF} offen sc1", tag=tag)
    def zflag_pre():
        p(f"v_and_b32 v{FLG+2}, 31, v0\nv_lshlrev_b32 v{FLG+2}, 3, v{FLG+2}")
        zflag_issue('fc')
    def zflag_check():
        p.wait_vm('fc')
        p(f"""s_mov_b32 {sCNT}, 0
        L_zf:
        v_xor_b32 v{FLG}, {sT0}, v{FLG}
        v_xor_b32 v{FLG+1}, {sT1}, v{FLG+1}
        v_or_b32 v{FLG}, v{FLG}, v{FLG+1}
        v_cmp_ne_u32 vcc, 0, v{FLG}
        s_cbranch_vccz L_zf_ok
        s_add_u32 {sCNT}, {sCNT}, 1
        s_cmp_ge_u32 {sCNT}, {SPIN_LIMIT}
        s_cbranch_scc1 L_zf_ok""")
        zflag_issue('untracked')
        p("s_waitcnt vmcnt(0)\ns_branch L_zf\nL_zf_ok:", tag='untracked')
        if stamps: p(f"v_writelane_b32 v30, {sCNT}, 30")
    PT = [(0, 1), (2, 3), (4, 5), (6,)]
    U = [(ps, k, tl) for ps in range(4) for k in range(16) for tl in range(len(PT[ps]))]
    NR = 21
    def zreg(n): return ZR + 4 * (n % NR)
    def z_load(n):
        ps, k, tl = U[n]
        if k == 0 and tl == 0 and ps: p(f"v_add_u32 {vZld}, 32768, {vZld}")
        p(f"buffer_load_dwordx4 {vr(zreg(n))}, {vZld}, {sWS}, {sZK[k]} offen offset:{1024*tl} sc1", tag=('z', n))
    def z_setup():
        assert not Q['c']
        zflag_check()
        stamp('zf_ok')
        p(f"v_add_u32 {vZld}, {sZB}, {vL16}")
        p(f"s_lshl_b32 {sZK[0]}, {sROT2}, 11")
        for k in range(1, 16): p(f"s_xor_b32 {sZK[k]}, {sZK[0]}, {k << 11}")
        for n in range(NR): Q['z'].append((('z', n), lambda n=n: z_load(n)))
    def w_setup():
        p(f"""v_lshrrev_b32 v14, 3, v0
    v_lshlrev_b32 v15, 10, v14
    v_and_b32 v14, 7, v0
    v_lshlrev_b32 v16, 1, {vQ}
    v_xor_b32 v14, v14, v16
    v_lshl_add_u32 {vWoSrc[0]}, v14, 4, v15
    v_add_u32 {vWoSrc[1]}, 7168, {vWoSrc[0]}
    v_add_u32 {vWoSrc[2]}, 7168, {vWoSrc[1]}
    v_add_u32 {vWoSrc[3]}, 7168, {vWoSrc[2]}
    s_lshr_b32 {sA}, {sW}, 1
    s_mul_i32 {sA}, {sA}, {448*1024}
    s_lshl_b32 {sB}, {o['fcb'] if o.get('fcb') is not None else sCB}, 7
    s_add_u32 {sA}, {sA}, {sB}
    s_and_b32 {sB}, {sW}, 1
    s_mul_i32 {sB}, {sB}, {112*1024}
    s_add_u32 {sWO}, {sA}, {sB}
    s_add_u32 {sWO1}, {sWO}, {sB}""")
        for pc in o['wo_order']:
            for jj in range(4):
                def f(pc=pc, jj=jj):
                    if jj == 0: p(f"s_add_u32 m0, {sW4K}, {WOB[pc]}")
                    if pc < 6:
                        if jj == 0: p(f"s_add_u32 {sG0}, {sWO}, {(224*(pc & 1) + 32*(pc >> 1))*1024}")
                    else:
                        p(f"s_add_u32 {sG0}, {sWO1}, {(112*(jj & 1) + 96 + 8*(jj >> 1) - 8*jj)*1024}")
                    dma(vWoSrc[jj], sWOUT, sG0, ('wo', pc), imm=jj*1024)
                Q['w'].append((('wo', pc), f))
    def addhook(key, f):
        g = hooks.get(key)
        hooks[key] = f if g is None else (lambda: (g(), f()))
    addhook(('done', o['poll_after'] + o['zf_delay']), zflag_store)
    addhook(('step', 17, 3), zflag_pre)
    addhook(('done', 17), z_setup)
    addhook(('done', 15), lambda: (exch_write(Z1), sch.update(hmax=6)))
    addhook(('post', 17), lambda: exch_read(Z1, 'L_ex1'))
    if o['hfine']:
        addhook(('done', 11), lambda: sch.update(hmax=5))
        addhook(('step', 17, 3), lambda: sch.update(hmax=7))
    addhook(('step', 17, 1), lambda: exch_fix(Z1, 'L_ex1'))
    addhook(('done', 15), w_setup)
    if isinstance(o['clr_at'], list):
        for i_, n_ in enumerate(o['clr_at']):
            if n_ >= 8: addhook(('done', n_), lambda i_=i_: h_store(i_, 232, 'clr'))
    addhook(('done', 15), lambda: stamp('z1_mfma'))
    if o['gelu_fill']: addhook(('done', 15), lambda: pf.extend(gelu(Z1, 28, o['gelu_fill'] == 2)))
    pipeline(range(8, 18), hooks)
    sch['hmax'] = 8
    flush_pf()
    barrier()
    stamp('a_mfma')
    r = lines(f"""v_mul_f32 v14, {fh(-math.log2(math.e))}, v{ACA+16}
    v_exp_f32 v14, v14
    v_add_f32 v14, 1.0, v14
    v_rcp_f32 {vG}, v14""")
    for x in range(2):
        r += lines(f"""v_cvt_pk_bf16_f32 v{CFR+4*x}, v{ACA+4*x}, v{ACA+4*x+1}
        v_cvt_pk_bf16_f32 v{CFR+4*x+1}, v{ACA+4*x+2}, v{ACA+4*x+3}
        v_cvt_pk_bf16_f32 v{CFR+4*x+2}, v{ACA+8+4*x}, v{ACA+8+4*x+1}
        v_cvt_pk_bf16_f32 v{CFR+4*x+3}, v{ACA+8+4*x+2}, v{ACA+8+4*x+3}""")
    for x in range(2):
        for var in range(2):
            r.append(f"v_mfma_f32_16x16x32_bf16 {vr(G2O+8*x+4*var)}, {vr(COEF+4*var)}, {vr(CFR+4*x)}, 0")
    r += lines(f"""v_lshlrev_b32 v24, 10, {vQ}
    v_lshl_add_u32 v24, {vC}, 4, v24
    s_lshl_b32 {sA}, {sOM}, 2
    s_add_u32 {sA}, {sA}, {VASM}
    v_add_u32 v24, {sA}, v24""")
    fg(r)
    p(f"""s_cmp_lg_u32 {sCB}, 0
    s_cbranch_scc1 L_nofix
    v_mfma_f32_16x16x32_bf16 {vr(G2O+16)}, {vr(COEF+8)}, {vr(CFR)}, 0
    v_mfma_f32_16x16x32_bf16 {vr(G2O+20)}, {vr(COEF+12)}, {vr(CFR)}, 0
    s_lshl_b32 {sA}, {sRB}, 2
    s_add_u32 {sA}, {sA}, {sOM}
    s_lshl_b32 {sA}, {sA}, 6
    s_add_u32 {sA}, {sA}, {WS_G}
    v_lshlrev_b32 v14, 2, {vC}
    s_mov_b64 exec, 0xffff""", tag='untracked')
    p(f"buffer_store_dword {vG}, v14, {sWS}, {sA} offen sc1", tag='untracked')
    p(f"s_mov_b64 exec, {sC0}", tag='untracked')
    for k in range(4):
        re1, im1, re2, im2 = f"v{G2O+k}", f"v{G2O+4+k}", f"v{G2O+16+k}", f"v{G2O+20+k}"
        p(f"""v_add_f32 v14, {re1}, {re2}
        v_add_f32 v15, {im1}, {im2}
        v_sub_f32 v16, {im1}, {im2}
        v_sub_f32 v17, {re2}, {re1}
        v_mul_f32 {re1}, 0.5, v14
        v_mul_f32 {im1}, 0.5, v15
        v_mul_f32 v16, 0.5, v16
        v_mul_f32 v17, 0.5, v17
        v_cvt_pk_bf16_f32 v16, v16, v17
        ds_write_b32 v24, v16 offset:{8192 + k*256}""", tag='untracked')
    p("s_mov_b64 exec, -1\nL_nofix:\ns_nop 7")
    freed.add('fb')
    r = []
    k = 0
    for x in range(2):
        for i in range(4):
            t = f"v{16 + (k % 8)}"; k += 1
            r.append(f"v_cvt_pk_bf16_f32 {t}, v{G2O+8*x+i}, v{G2O+8*x+4+i}")
            r.append(f"ds_write_b32 v24, {t} offset:{x*4096 + i*256}")
    fg(r)
    p("s_waitcnt lgkmcnt(0)")
    barrier()
    p(f"""s_add_u32 {sA}, {sW1K}, {VASM}
    v_add_u32 v14, {sA}, {vL16}""")
    for it in range(3):
        p(f"ds_read_b128 {vr(G2O+4*it)}, v14 offset:{it*4096}")
    p(f"""s_lshl_b32 {sB}, {sRB}, 8
    s_add_u32 {sB}, {sB}, {WS_V}
    s_lshl_b32 {sA}, {sCB}, 14
    s_add_u32 {sA}, {sA}, {sB}
    s_add_u32 {sC}, {sA}, 8192
    s_add_u32 {sB}, {sB}, {16*8192}
    s_cmp_eq_u32 {sCB}, 0
    s_cselect_b32 {sB}, {sB}, {WS_SIZE}""")
    def v_stores():
        p("s_waitcnt lgkmcnt(0)")
        p(f"buffer_store_dwordx4 {vr(G2O)}, {vVad[0]}, {sWS}, {sA} offen sc1", tag='vst')
        p(f"buffer_store_dwordx4 {vr(G2O+4)}, {vVad[0]}, {sWS}, {sC} offen sc1", tag='vst')
        p(f"s_mov_b64 exec, {sC0}")
        p(f"buffer_store_dwordx4 {vr(G2O+8)}, {vVad[0]}, {sWS}, {sB} offen sc1", tag='vst')
        p("s_mov_b64 exec, -1")
    if not o['v_late']: v_stores()
    if o['clr_at'] == 'v': clears()
    stamp('v_pub')
    r = ([] if o['gelu_fill'] else gelu(Z1, 28)) + [f"v_sub_f32 v24, 1.0, {vG}", "v_mov_b32 v25, v24"]
    for i in range(14): r.append(f"v_pk_mul_f32 {vr(Z1+2*i,2)}, {vr(Z1+2*i,2)}, v[24:25]")
    gel1 = r

    gel1 += lines(f"""v_lshlrev_b32 v{BS4}, 16, {vBsp}
    v_mov_b32 v{BS4+1}, v{BS4}
    v_mov_b32 v{BS4+2}, v{BS4}
    v_mov_b32 v{BS4+3}, v{BS4}""")
    fg(gel1)
    drain_h(8)
    while sch['cur']: issue(sch['cur'])
    while Q['z']: issue('z')
    if o['v_late']: v_stores()
    pend.add('xh')
    stamp('wsp_in')

    def acc(ps, u, tl): return ACC + (ps & 1) * 32 + (u * 2 + tl) * 4
    vRw = ['v10', 'v28', 'v29']; vRr = 'v2'; vVld = 'v5'; vGa = 'v25'
    fill = []
    for u in range(1, 4):
        fill += lines(f"""s_xor_b32 {sB}, {sW}, {u}
        s_mul_i32 {sB}, {sB}, 6144
        v_add_u32 {vRw[u-1]}, {sB}, {vL16}""")
    fill += lines(f"""s_mul_i32 {sB}, {sW}, 6144
    v_add_u32 {vRr}, {sB}, {vL16}
    s_lshl_b32 {sB}, {sW}, 5
    s_add_u32 {sTAU[0]}, {sB}, {sRB}
    s_xor_b32 {sTAU[1]}, {sTAU[0]}, 32""")
    fill.append(lambda: (barrier()))
    fill.append(lambda: p(f"""s_sub_u32 {sB}, 0, {sRB}
    s_lshl_b32 {sC}, {sCB}, 2
    s_sub_u32 {sE}, 31, {sC}
    s_cmp_lt_u32 {sCB}, 4
    s_cselect_b32 {sB}, {sRB}, {sB}
    s_cselect_b32 {sC}, {sC}, {sE}
    s_cselect_b32 {sVS}, 1, -1
    s_cselect_b64 vcc, -1, 0"""))
    fill += lines(f"""s_lshl_b32 {sVS}, {sVS}, 13
    s_and_b32 {sB}, {sB}, 15
    s_mul_i32 {sE}, {sB}, {VT1}
    s_lshl_b32 {sC}, {sC}, 13
    s_add_u32 {sE}, {sE}, {sC}
    s_and_b32 {sB}, {sW}, 1
    s_lshl_b32 {sB}, {sB}, 12
    s_add_u32 {sE}, {sE}, {sB}
    s_add_u32 {sE}, {sE}, {WS_V}
    v_sub_u32 v14, 16, {vC}
    v_lshrrev_b32 v15, 4, v14
    v_and_b32 v14, 15, v14
    v_lshl_add_u32 v14, v15, 9, v14
    v_cndmask_b32 v14, v14, {vC}, vcc
    v_lshlrev_b32 v14, 4, v14
    v_lshl_add_u32 {vVld}, {vQ}, 8, v14
    s_lshr_b32 {sD}, {sB}, 1
    s_add_u32 {sB}, {sB}, {WS_H}
    s_mul_i32 {sHO[0]}, {sTAU[0]}, {28*1024}
    s_add_u32 {sD}, {sD}, {sHO[0]}
    s_add_u32 {sD}, {sD}, {WS_H + 24*1024}
    s_add_u32 {sHO[0]}, {sHO[0]}, {sB}
    s_mul_i32 {sHO[1]}, {sTAU[1]}, {28*1024}
    s_add_u32 {sHO[1]}, {sHO[1]}, {sB}
    v_lshrrev_b32 v14, 2, {vC}
    v_and_b32 v15, 1, {vQ}
    v_lshrrev_b32 v16, 3, {vC}
    v_lshl_add_u32 v16, v15, 1, v16
    v_and_b32 v17, 3, {vC}
    v_lshlrev_b32 v17, 3, v17
    s_and_b32 {sB}, {sW}, 1
    s_lshl_b32 {sB}, {sB}, 13
    v_add_u32 v17, {sB}, v17
    v_lshl_add_u32 v14, {vQ}, 2, v14
    v_lshl_add_u32 v14, v14, 7, v17
    v_lshlrev_b32 {vGa}, 2, {vC}""")
    vWoRd2 = ['v7', 'v11', 'v12', 'v24']
    for dt in range(4):
        fill += lines(f"""v_xor_b32 v15, {dt}, v16
        v_lshl_add_u32 {vWoRd2[dt]}, v15, 5, v14""")
    if o['f_where'] != 2: ffill = []
    else:
        ffill = [l.replace(sA, 's44').replace(sB, 's45').replace(sC, 's46') for l in ffill]
        hd = ffill[:5]
        ffill = [lambda: p('\n'.join(hd))] + ffill[5:]
    def reduction(ps, inline):
        nt = len(PT[ps]); rb_ = RED
        r = []
        for u in range(1, 4):
            for tl in range(nt):
                r.append(f"ds_write_b128 {vRw[u-1]}, {vr(acc(ps,u,tl))} offset:{rb_ + ((u-1)*2+tl)*1024}")
                if not inline: r += ['', '']
        def sync():
            w = [t for t in p.vm if isinstance(t, tuple) and t[0] == 'wo']
            need = ['vst', 'clr'] + (w[:-o['wo_lag']] if (o['wo_lag'] and ps < 3 and Q['w']) else w)
            if ps >= 2 or ps == 0: p.wait_vm(need if ps >= 2 else ['vst', 'clr'], 'lgkmcnt(0)')
            else: p("s_waitcnt lgkmcnt(0)")
            barrier()
            if ps >= 2:
                for pc in range(7):
                    if need.count(('wo', pc)) == 4: wo_vis.add(pc)
            if ps == 0: flag_store(WS_FV)
        if not inline: r += [''] * 3
        r.append(sync)
        for u in range(1, 4):
            for tl in range(nt):
                r.append((f"ds_read_b128 {vr(acc(ps,u,tl))}, {vRr} offset:{rb_ + ((u-1)*2+tl)*1024}", ('rd', ps, u)))
        if not inline: r += [''] * 4 + [lambda: (p.wait_lg(('rd', ps, 3)), barrier())]
        a0 = acc(ps, 0, 0)
        for u in range(1, 4):
            r.append(lambda u=u: p.wait_lg(('rd', ps, u)))
            if inline:
                for i in range(2 * nt): r.append(f"v_pk_add_f32 {vr(a0+2*i,2)}, {vr(a0+2*i,2)}, {vr(acc(ps,u,0)+2*i,2)}")
            else:
                for i in range(4 * nt): r.append(f"v_add_f32 v{a0+i}, v{a0+i}, v{acc(ps,u,0)+i}")
        for i in range(4 * nt): r.append(f"v_mul_f32 v{a0+i}, v{a0+i}, v{Z1+8*ps+i}")
        for i in range(2 * nt): r.append(f"v_cvt_pk_bf16_f32 v{PKH+i}, v{a0+2*i}, v{a0+2*i+1}")
        for i in range(2 * nt): r.append(f"v_min_u32 v{PKH+i}, -2, v{PKH+i}")
        if nt == 1:
            r += [f"v_mov_b32 v{PKH+2}, v{PKH}", f"v_mov_b32 v{PKH+3}, v{PKH+1}",
                  f"v_permlane32_swap_b32 v{PKH}, v{PKH+2}", f"v_permlane32_swap_b32 v{PKH+1}, v{PKH+3}"]
        r.append(lambda: (h_store(ps, PKH, 'hst'), red_done.add(ps)))
        if inline: r.append(barrier)
        return r
    wo_vis = set(); red_done = set(); npost = [0]
    last_setup = fill[-1]
    if o['clr_at'] == 'p2':
        fill = [f"v_mov_b32 v{PKH+i}, -1" for i in range(4)] + fill
        for i_ in range(4): fill.insert(6 + o['clr_gap'] * i_, lambda i_=i_: h_store(i_, PKH, 'clr'))
    def setup_done(): return last_setup not in fill
    def emit(x):
        if callable(x): x()
        elif isinstance(x, tuple): p(x[0], tag=x[1])
        elif x: p(x)
    ringfree = [zreg(n) for n in range(112 - NR, 112)]
    Vreg = {}
    for dt in range(4):
        for kl in range(4):
            Vreg[(kl, dt)] = ar(64 * dt + 4 * (kl - 2)) if kl >= 2 else vr(ringfree[2 * dt + kl])
    pool = ringfree[8:] + [ACC + 4 * i for i in range(8)] + [Z1 + 4 * i for i in range(7)]
    Hreg = {g: pool[8 * g: 8 * g + 8] for g in range(4)}
    def h_load(g, i, tag):
        sr = sA if tag == 'untracked' else sG1
        if g < 3:
            if i % 4 == 0: p(f"s_add_u32 {sr}, {sHO[1 - i // 4]}, {8192*g}")
            p(f"buffer_load_dwordx4 {vr(Hreg[g][i])}, {vL16}, {sWS}, {sr} offen offset:{1024*(i%4)} sc1", tag=tag)
        else:
            if i % 2 == 0: p(f"s_xor_b32 {sr}, {sD}, {1024*i}")
            p(f"buffer_load_dwordx4 {vr(Hreg[g][i])}, {vL16}, {sWS}, {sr} offen offset:{1024*(i%2)} sc1", tag=tag)
    post = []
    def v_load(kl, dt):
        p(f"s_mul_i32 {sG2}, {sVS}, {dt}\ns_add_u32 {sG2}, {sG2}, {sE}")
        p(f"buffer_load_dwordx4 {Vreg[(kl,dt)]}, {vVld}, {sWS}, {sG2} offen offset:{kl*1024} sc1", tag='vt')
        p(f"buffer_load_dwordx4 {Vreg[(kl+1,dt)]}, {vVld}, {sWS}, {sG2} offen offset:{kl*1024+1024} sc1", tag='vt')
    for dt in range(4): post.append((112 - NR + 2 * dt + 1, None, lambda dt=dt: v_load(0, dt)))
    for dt in range(4): post.append((100 + 2 * dt, None, lambda dt=dt: v_load(2, dt)))
    def g_load():
        for u in range(2):
            p(f"s_lshl_b32 {sG2}, {sTAU[u]}, 6\ns_add_u32 {sG2}, {sG2}, {WS_G}")
            p(f"buffer_load_dword v{BS4+2*u}, {vGa}, {sWS}, {sG2} offen sc1", tag='g')
    post.append((98, None, g_load))
    for g in range(2):
        for i in range(8):
            idx = 8 * g + i
            post.append((112 - NR + 8 + idx if idx < 13 else 0, None if idx < 13 else 2, lambda g=g, i=i: h_load(g, i, ('h', g))))
    def wreg(s_, dt): return 64 * dt + (8 + 4 * s_ if s_ < 14 else 4 * (s_ - 14))
    wadj = [0]
    def wo_read(s_, dt, h):
        sl = s_ if s_ < 14 else s_ - 2
        off = WOB[sl >> 1] + (sl & 1) * 4096 + h * 2048
        want = [RING + 3 * SL, RING + 3 * SL, RING, RING, RING, 0, 0][sl >> 1]
        if want != wadj[0]:
            d = want - wadj[0]
            for r_ in vWoRd2: p(f"v_add_u32 {r_}, {d}, {r_}" if d > 0 else f"v_subrev_u32 {r_}, {-d}, {r_}")
            wadj[0] = want
        if s_ == 14 and dt == 0 and h == 0:
            for r_ in vWoRd2: p(f"v_xor_b32 {r_}, 8192, {r_}")
        p(f"ds_read_b64_tr_b16 {ar(wreg(s_,dt)+2*h,2)}, {vWoRd2[dt]} offset:{off - want}", tag=('wf', s_))
    wrd = [(s_, dt, h) for s_ in range(16) for dt in range(4) for h in range(2)]

    if o['f_pre']:
        for x in fill + ffill: emit(x)
        fill = []; ffill = []
    for n, (ps, k, tl) in enumerate(U):
        if k == 0 and tl == 0 and ps:
            fill = reduction(ps - 1, False) + fill
            if o.get('fine2'): stamp(f'pass{ps-1}')
        if n == o['fv_at']: flag_issue(WS_FV, 16, 'fv')
        if n == 112 - NR - 1: flag_check(WS_FV, 16, 'fv')
        if n % 2 == 0: p.wait_vm([('z', min(n + 1, 111))])
        if n == 0: stamp('z_first')
        for j, u in enumerate((1, 2, 3, 0)):
            a_ = acc(ps, u, tl)
            c_ = vr(a_) if k else (vr(BS4) if u == 0 else '0')
            p(f"v_mfma_f32_16x16x32_bf16 {vr(a_)}, {vr(zreg(n))}, {ar(64*u+4*k)}, {c_}")
            if j < 3:
                x = fill.pop(0) if fill else ''
                if x == '' and ffill and setup_done(): x = ffill.pop(0)
                emit(x)
                if isinstance(x, str) and x.startswith('s_') and fill: emit(fill.pop(0))
                if ps == 3 and fill: emit(fill.pop(0))
                if ps == 3 and not fill:
                    for _ in range(2):
                        if wrd[0][0] + 2 < k and (wrd[0][0] >> 1) in wo_vis: wo_read(*wrd.pop(0))
            if j == 1 and len(Q['w']) > 4 * o['wo_defer'] and legal(Q['w'][0][0]) and n % o['wo_every'] == 0: issue('w')
        if n + NR < 112: z_load(n + NR)
        else:
            while len(Q['w']) > 4 * o['wo_defer']: issue('w')
            if post and npost[0] < o['post_n'] and post[0][0] <= n and (post[0][1] is None or post[0][1] in red_done): post.pop(0)[2](); npost[0] += 1
    if o.get('verbose'): print('leftover', len(fill), len(ffill), 'wrd', len(wrd))
    for x in fill + ffill: emit(x)
    stamp('p2_mfma')
    r3 = reduction(3, True)
    for i, x in enumerate(r3):
        if i == len(r3) - 2:
            while post and o['pre_store']: post.pop(0)[2]()
        emit(x)
        if post and o['pre_store'] and i % 2 == 1: post.pop(0)[2]()
    stamp('h_pub')
    A3 = ACC + 32
    bg3 = [x[2] for x in post] + [lambda: issue('w')] * len(Q['w'])
    tpub = [0]
    def fg3(ins, nread=2):
        for i, l in enumerate(ins):
            emit(l)
            for _ in range(nread):
                if wrd and (wrd[0][0] < 14 or ydone) and min(wrd[0][0] >> 1, 6) in wo_vis: wo_read(*wrd.pop(0))
            tpub[0] += 1
            if tpub[0] == o['h2_at']: bg3.extend([lambda i=i_: h_load(2, i, ('h', 2)) for i_ in range(8)])
            if tpub[0] == o['h3_at']: bg3.extend([lambda i=i_: h_load(3, i, ('h', 3)) for i_ in range(4)])
            if bg3 and i % o['bg3e'] == o['bg3e'] - 1: bg3.pop(0)()
    def need_h(g):
        if not any(t == ('h', g) for t in p.vm) and g >= 2 and tpub[0] < o[f'h{g}_at']:
            bg3.extend([lambda i=i_: h_load(g, i, ('h', g)) for i_ in range(len(Hreg[g]))]); o[f'h{g}_at'] = -1
        while sum(t == ('h', g) for t in p.vm) < len(Hreg[g]): bg3.pop(0)()
        p.wait_vm([('h', g)])
    def check_ops(g):
        rs = [r_ + i for r_ in Hreg[g] for i in range(4) if i % (4 // o['chk']) == 0]
        ops = [f"v_max3_u32 v23, v{rs[0]}, v{rs[1]}, v{rs[2]}"]
        rs = rs[3:]
        while len(rs) >= 2:
            ops.append(f"v_max3_u32 v23, v23, v{rs[0]}, v{rs[1]}"); rs = rs[2:]
        if rs: ops.append(f"v_max_u32 v23, v23, v{rs[0]}")
        ops.append(f"v_cmp_eq_u32 vcc, -1, v23")
        return ops
    def check_branch(g):
        p(f"""s_cbranch_vccz L_ok{g}
        s_call_b64 {sRET}, L_retry{g}
        L_ok{g}:""")
    ydone = []
    while sum(t == 'vt' for t in p.vm) < 16 or 'g' not in p.vm: bg3.pop(0)()
    p(f"""s_xor_b32 {sA}, {sW}, 1
    s_lshl_b32 {sA}, {sA}, 12
    v_add_u32 v14, {sA}, {vL16}
    v_add_u32 v16, {sW4K}, {vL16}
    v_lshlrev_b32 v15, 17, {vC}
    v_lshl_add_u32 v15, {vQ}, 3, v15
    s_lshl_b32 {sF}, {sTAU[0]}, 10
    s_lshl_b32 {sB}, {sCB}, 7
    s_add_u32 {sF}, {sF}, {sB}
    s_mov_b32 {sCNT}, 0""")
    p.wait_vm(['vt', 'g'])
    ym = []
    for kl in range(4):
        for u in range(2):
            for dt in range(4):
                a_ = A3 + 16 * u + 4 * dt
                ym.append(f"v_mfma_f32_16x16x32_bf16 {vr(a_)}, {Vreg[(kl,dt)]}, {vr(FF+16*u+4*kl)}, {vr(a_) if kl else '0'}")
    fg3(ym, o['ynr'])
    ydone.append(1)
    need_h(0)
    sc = check_ops(0) + [f"v_pk_mul_f32 {vr(A3+16*u+2*i,2)}, {vr(A3+16*u+2*i,2)}, {vr(BS4+2*u,2)} op_sel_hi:[1,0]" for u in range(2) for i in range(8)]
    fg3(sc, o['snr'])
    check_branch(0)
    stamp('y_done')
    for g in range(4):
        ms = []
        if g < 3:
            for i in range(8):
                u = 1 - i // 4; s_ = 4 * g + i % 4
                for dt in range(4):
                    a_ = A3 + 16 * u + 4 * dt
                    ms.append((s_, f"v_mfma_f32_16x16x32_bf16 {vr(a_)}, {ar(wreg(s_,dt))}, {vr(Hreg[g][i])}, {vr(a_)}"))
        else:
            for i in range(4):
                for dt in range(4):
                    a_ = A3 + 4 * dt
                    ms.append((12 + i, f"v_mfma_f32_16x16x32_bf16 {vr(a_)}, {ar(wreg(12+i,dt))}, {vr(Hreg[g][i])}, {vr(a_)}"))
        chk = check_ops(g + 1) if g < 2 else []
        seq = []
        for i, (s_, m) in enumerate(ms):
            def mm(s_=s_, m=m):
                while wrd and wrd[0][0] <= s_:
                    assert min(wrd[0][0] >> 1, 6) in wo_vis
                    wo_read(*wrd.pop(0))
                p.wait_lg(('wf', s_))
                p(m)
            seq.append(mm)
            if chk and i == len(ms) - len(chk) - 1: seq.append(lambda g=g: need_h(g + 1))
            if chk and i >= len(ms) - len(chk) and len(chk) >= len(ms) - i: seq.append(chk.pop(0))
            if g == 2 and 20 <= i < 24: seq.append(f"ds_write_b128 v14, {vr(A3+16+4*(i-20))} offset:{RED + (i-20)*1024}")
        seq += chk
        fg3(seq, 1)
        if g < 2: check_branch(g + 1)
        if g == o['wo_bar'] and len(wo_vis) < 7:
            while Q['w']: bg3.pop(0)()
            p.wait_vm([('wo', 6)]); barrier(); wo_vis.update(range(7))
        if g == 2:
            while wrd: wo_read(*wrd.pop(0))
            p("s_waitcnt lgkmcnt(0)\ns_barrier")
            for dt in range(4): p(f"ds_read_b128 {vr(A3+16+4*dt)}, v16 offset:{RED + dt*1024}")
            p("s_waitcnt lgkmcnt(0)")
            for i in range(8): p(f"v_pk_add_f32 {vr(A3+2*i,2)}, {vr(A3+2*i,2)}, {vr(A3+16+2*i,2)}")
            if o['out_mode'] == 1:
                p(f"""v_and_b32 v14, 1, {vQ}
                v_lshlrev_b32 v14, 5, v14
                v_lshrrev_b32 v16, 1, {vQ}
                v_lshl_add_u32 v14, v16, 4, v14
                v_lshl_add_u32 v15, {vC}, 17, v14""")
            if o['out_mode'] == 2:
                p(f"""s_mul_i32 {sA}, {sW}, 2304
                s_add_u32 {sA}, {sA}, {RED + 16384}
                v_mul_u32_u24 v14, 144, {vC}
                v_lshl_add_u32 v14, {vQ}, 3, v14
                v_add_u32 v14, {sA}, v14
                v_lshrrev_b32 v15, 3, v0
                v_and_b32 v17, 7, v0
                v_mul_u32_u24 v16, 144, v15
                v_lshl_add_u32 v16, v17, 4, v16
                v_add_u32 v16, {sA}, v16
                v_lshlrev_b32 v15, 17, v15
                v_lshl_add_u32 v15, v17, 4, v15""")
            stamp('g2_done')
            need_h(3)
            for l in check_ops(3): p(l)
            check_branch(3)
            stamp('h3_in')
    if o['out_mode'] == 0:
        for dt in range(4):
            p(f"v_cvt_pk_bf16_f32 v{18+2*dt}, v{A3+4*dt}, v{A3+4*dt+1}")
            p(f"v_cvt_pk_bf16_f32 v{19+2*dt}, v{A3+4*dt+2}, v{A3+4*dt+3}")
            p(f"buffer_store_dwordx2 {vr(18+2*dt,2)}, v15, {sOUT}, {sF} offen offset:{32*dt} {o['outfl']}")
    elif o['out_mode'] == 1:
        for dt in range(4):
            p(f"v_cvt_pk_bf16_f32 v{18+2*dt}, v{A3+4*dt}, v{A3+4*dt+1}")
            p(f"v_cvt_pk_bf16_f32 v{19+2*dt}, v{A3+4*dt+2}, v{A3+4*dt+3}")
        for pr in range(2):
            p(f"v_permlane16_swap_b32 v{18+4*pr}, v{20+4*pr}\nv_permlane16_swap_b32 v{19+4*pr}, v{21+4*pr}")
            p(f"buffer_store_dwordx4 {vr(18+4*pr)}, v15, {sOUT}, {sF} offen offset:{64*pr} {o['outfl']}")
    else:
        for dt in range(4):
            p(f"v_cvt_pk_bf16_f32 v{18+2*dt}, v{A3+4*dt}, v{A3+4*dt+1}")
            p(f"v_cvt_pk_bf16_f32 v{19+2*dt}, v{A3+4*dt+2}, v{A3+4*dt+3}")
            p(f"ds_write_b64 v14, {vr(18+2*dt,2)} offset:{32*dt}")
        p("s_waitcnt lgkmcnt(0)")
        p(f"ds_read_b128 {vr(A3)}, v16\nds_read_b128 {vr(A3+4)}, v16 offset:{8*144}")
        p(f"s_add_u32 {sA}, {sF}, {8 << 17}\ns_waitcnt lgkmcnt(1)")
        p(f"buffer_store_dwordx4 {vr(A3)}, v15, {sOUT}, {sF} offen {o['outfl']}")
        p("s_waitcnt lgkmcnt(0)")
        p(f"buffer_store_dwordx4 {vr(A3+4)}, v15, {sOUT}, {sA} offen {o['outfl']}")
    if stamps:
        stamp('end')
        p(f"""v_writelane_b32 v30, {sCNT}, 31
        s_lshl_b32 {sA}, s2, 2
        s_add_u32 {sA}, {sA}, {sW}
        s_lshl_b32 {sA}, {sA}, 8
        s_add_u32 {sA}, {sA}, {WS_STAMP}
        v_lshlrev_b32 v14, 3, v0
        s_mov_b64 exec, {sLO32}""")
        p(f"buffer_store_dwordx2 v[30:31], v14, {sWS}, {sA} offen")
    if o.get('enc'):
        if o['enc'] == 'end': p("s_memrealtime s[98:99]\ns_waitcnt lgkmcnt(0)")
        if o['enc'] == 'drain': p("s_waitcnt vmcnt(0)\ns_memrealtime s[98:99]\ns_waitcnt lgkmcnt(0)")
        if o['enc'] == 'none': p(f"s_mov_b32 s98, {sT0}")
        p("""L_padspin:
        s_memrealtime s[100:101]
        s_waitcnt lgkmcnt(0)
        s_sub_u32 s100, s100, s98
        s_cmp_lt_i32 s100, 5000
        s_cbranch_scc1 L_padspin""")
    p("L_end:\ns_endpgm")
    for b in range(4):
        p(f"L_retry{b}:")
        for i in range(len(Hreg[b])): h_load(b, i, 'untracked')
        p("s_waitcnt vmcnt(0)")
        for l in check_ops(b): p(l)
        p(f"""s_add_u32 {sCNT}, {sCNT}, 1
        s_cmp_ge_u32 {sCNT}, {SPIN_LIMIT}
        s_cbranch_scc1 L_retry{b}_r
        s_cbranch_vccnz L_retry{b}
        L_retry{b}_r:
        s_setpc_b64 {sRET}""")
    p.raw(f""".section .rodata,"a"
.p2align 6
.amdhsa_kernel {NAME}
  .amdhsa_next_free_vgpr 512
  .amdhsa_next_free_sgpr 102
  .amdhsa_accum_offset 256
  .amdhsa_group_segment_fixed_size 0
  .amdhsa_kernarg_size 112
  .amdhsa_user_sgpr_count 2
  .amdhsa_user_sgpr_kernarg_segment_ptr 1
  .amdhsa_system_sgpr_workgroup_id_x 1
.end_amdhsa_kernel""")
    assert not bgq
    return p.text()

def code_size(txt):
    import subprocess, re
    open('_sz.s', 'w').write(txt)
    subprocess.run(['clang', '-x', 'assembler', '-target', 'amdgcn-amd-amdhsa', '-mcpu=gfx950', '-c', '_sz.s', '-o', '_sz.o'], check=True)
    out = subprocess.run(['llvm-objdump', '-h', '_sz.o'], capture_output=True, text=True).stdout
    return int(re.search(r'\.text\s+([0-9a-f]+)', out).group(1), 16)

def write(fn, stamps=False, opt=None):
    opt = dict(opt or {})
    opt['code_size'] = code_size(gen(stamps, opt)) & ~3
    txt = gen(stamps, opt)
    assert code_size(txt) >= opt['code_size']
    open(fn, 'w').write(txt)
    if stamps: open(fn + '.names', 'w').write('\n'.join(STAMPN))

if __name__ == '__main__':
    stamps = '--stamps' in sys.argv
    out = [a for a in sys.argv[1:] if not a.startswith('--')]
    write(out[0], stamps)
```

```python
import sys, math, struct
from prog import Prog

NAME = 'gated_mix__spectral_fnet__mixer_gmlp__prompt_kernel'

HEADER = """; gated_mix(spectral FNet, mixer gMLP): one persistent launch, 256 workgroups (one per CU), 4 waves each.
; Workgroup (rb, cb): rows {128a + 4rb + i}, 112 hidden columns.
;   P1  z2 = gelu(x w_in) -> row statistics exchanged through d_ws (tagged granules) -> normalised z2 published;
;       z1 kept in registers; hidden-dim DFT + 16-point sequence DFT stage published as V; w_sp tile staged into AGPRs.
;   P2  g = w_sp z2n + b (K split over the waves, 4 column passes, LDS reduction), h = z1 (1-gate) g published.
; Hand-offs use write-through (sc1) stores and sc1 loads guarded by a per-launch tag (d_debug) or a sentinel; every spin is bounded."""

def f2u(x): return struct.unpack('<I', struct.pack('<f', x))[0]
def fh(x): return f"0x{f2u(x):08x}"

WS_Z2N = 0
WS_H = 0x400000
WS_V = 0x800000
VT1 = 17 * 8192
WS_ST = 0xC00000
WS_G = 0xC80000
WS_FC = 0xC90000
WS_FV = 0xCA0000
WS_STAMP = 0xD00000
WS_SIZE = 0x1000000
SL = 16 * 1040 + 16
NSL = 5
RING = 4 * SL
HB = 8 * 1040
GATE = 9 * SL
RED = 32768
VASM = 163840 - 12288
WO0 = 106496
WO1 = 0
RED3 = 90112
LDS_TOTAL = 163840
SPIN_LIMIT = 200000

sX, sHRE, sHIM, sWIN, sWSP, sWOUT, sOUT, sWS, sDBG, sBSP, sGATE = [f"s[{8+4*i}:{11+4*i}]" for i in range(11)]
SRD = dict(X=8, HRE=12, HIM=16, WIN=20, WSP=24, WOUT=28, OUT=32, WS=36, DBG=40, BSP=44, GATE=48)
KOFF = dict(X=0, WIN=48, HRE=24, HIM=32, WS=104, DBG=96, WSP=56, WOUT=72, OUT=88, BSP=64, GATE=80)
sRB, sCB, sW, sOM, sT0, sT1, sROT2, sW1K = 's52', 's53', 's54', 's55', 's56', 's57', 's58', 's59'
sM1, sM2, sLT4, sLO32, sC0 = 's[60:61]', 's[62:63]', 's[64:65]', 's[66:67]', 's[68:69]'
sRET = 's[70:71]'
sOFF = ['s72', 's73', 's74', 's75']
sA, sB, sC, sD, sE, sF = 's76', 's77', 's78', 's79', 's80', 's81'
sCNT, sZB, sZST, sHST, sHS1 = 's82', 's83', 's84', 's85', 's86'
sG0, sG1, sG2 = 's87', 's88', 's89'
sKC = [f's{90+i}' for i in range(8)]
sROT = 's3'
sWSB = 's72'
sWSM = ['s73', 's74']
sZF = 's75'
sWD = 's70'

vL16, vL16b, vC, vQ, vBsp, vG = 'v1', 'v2', 'v3', 'v4', 'v5', 'v6'
vG1, vWspRd, vZst = 'v9', 'v11', 'v12'
vVad = ['v7']
vWinSrc = ['v8', 'v9', 'v13', 'v6']
vWspSrc = ['v10', 'v28', 'v29', 'v2']
vWoSrc = ['v9', 'v13', 'v26', 'v27']
vWoRd = ['v7', 'v10', 'v11', 'v12']
sTAU = ['s90', 's91']
sHO = ['s92', 's93']
sVS, sSG = 's94', 's95'
sWO, sWO1 = 's96', 's97'
sZK = [f's{8+i}' for i in range(16)]
vZld = 'v8'
ZR = 172; FF = 124; BS4 = 156; PKH = 160
WOB = [RING + i * SL for i in (3, 4, 0, 1, 2)] + [0, 16384]
WO_DEP = [['c13'], ['c14'], ['c15'], ['c16'], ['c17'], ['xh'], ['xh']]
sW4K = 's6'
sWDO = 's7'
vChk = 'v13'
Z1 = 32
ACC = 60
BUF = [172, 200, 228, 144]
Z2 = 60; ACA = 88; PK = 108; COEF = 240; FLG = 164
G2O = 60; CFR = 108
FB = [172, 188, 204]
FBA = [172, 60, 192]
vWinRd = [f'v{220+i}' for i in range(4)]
vWinRd2 = [f'v{232+i}' for i in range(4)]
vGateRd = 'v224'
vWdRd = 'v225'
vWdRdS = 'v236'
vWdA = 238
vRow = [f'v{226+i}' for i in range(4)]
vExW, vExR = 'v230', 'v231'
MEANI = 156
vSt0, vSt1 = 'v160', 'v161'
vTag = 162
vXrd1, vXrd2, vXrd1p, vXrd2p = 'v20', 'v21', 'v18', 'v19'
FPARK = 0
FA = [128, 192]
XF1, XF1P, XF2P, XF2 = 0, 64, 128, 192

def vr(b, n=4): return f"v[{b}:{b+n-1}]"
def ar(b, n=4): return f"a[{b}:{b+n-1}]"
def lines(s): return [l.strip() for l in s.strip('\n').split('\n') if l.strip() and not l.strip().startswith(';')]

def gen(stamps=False, opt=None):
    o = dict(xfl='', wfl='', sfl='', poll_after=13, t_win=90, t_h=80, lat=700, bmax=300, hold_c=5, zf_delay=2, leader=False, v_late=True, wo_order=[0, 1, 2, 3, 4, 5, 6], wo_every=5, h2_at=30, h3_at=90, wo_lag=0, clrfl='sc1', hfl='sc1', zfl='sc1', ldfl='sc1', v2_at=100, v2_gap=2, pre_keep=0, pf2=False, clr_dw=0, pf2_off={}, hrate=1, hwait=False, hfine=1, stat1=False, pf0w=0, pf0w_late=False, pf0=2, out_mode=2, tlb_list=(sWS, sWSP, sBSP), pre_store=False, wo_defer=0, wo_bar=0, pfs_at='c1', pfw_at='c7', pffl='', pf_full=False, pf_cost=1500, tlbw=1, tlb_sh=21, tlb_w0=True, zx=1, x_first=4, c0_early=False, bmax_z2=300, clr_at='p2', clr_gap=12, zst_gap=0, pre_c=1, xrate=6, f_where=2, ynr=2, snr=1, bg3e=3, norm_fill=False, gelu_fill=0, rot2m=15, rots=0, rotm=7, xm=3, hm=1, pf_rate=[2, 1.7], zf_at=19, post_n=13, rot2=1, f_pre=False, fgap=1, fv_at=76, hold=0, tag_at=3, omask=0, gmul=3, b_wd=True, tw_after=None, tg_after=None, tail_every=12, t_wd=False, t_wo=False, sfl2='', chk=4, tailn=14, w0_after=7, code_pf=True, lead=3,
             h_issue='late', outfl='sc1', w0_read=9, code_size=1024,
             rate_z2=[8]*8, gelu_every=14, post_stats=8, rate_z1=8, z2_extra=8, pre_x=0, fg_every=6)
    o.update(opt or {})
    p = Prog()
    global STAMPN
    STAMPN = []
    JN = []
    def stamp(name):
        if o.get('jitter'):
            JN.append(name)
            p(f"""s_memtime s[98:99]
            s_waitcnt lgkmcnt(0)
            s_lshr_b32 s98, s98, {o['jitter']}
            s_mul_i32 s98, s98, 0x9e3779b1
            s_lshr_b32 s98, s98, 29
            s_cmp_lg_u32 s98, 0
            s_cbranch_scc1 L_jit{len(JN)}
            s_sleep 100
            L_jit{len(JN)}:""", tag='untracked')
        if o.get('enc') == name:
            p("s_memrealtime s[98:99]\ns_waitcnt lgkmcnt(0)", tag='untracked')
        if not stamps: return
        i = len(STAMPN)
        p(f"""s_memrealtime s[98:99]
        s_memtime s[100:101]
        s_waitcnt lgkmcnt(0)
        v_writelane_b32 v30, s98, {i}
        v_writelane_b32 v31, s100, {i}""", tag='untracked')
        if o.get('verbose'): print('model', name, int(p.now), 'pipe', int(sch['pipe']), 'h issued', 8 - (len(Q['h']) + 7) // 8, 'read', len(done_h), 'c left', len(Q['c']) // 4)
        STAMPN.append(name)

    ring = [f'c{n}' for n in range(18)]
    pos = {it: i for i, it in enumerate(ring)}
    freed = set(); pend = set()
    bgq = []
    def legal(it):
        if it in pos: return pos[it] < NSL or ring[pos[it] - NSL] in freed
        if isinstance(it, str) and it[0] == 'h':
            j = int(it[1:])
            return ('x' if j < 2 else f'h{j-2}') in freed
        if it[0] == 'z': return it[1] < 17 or 'fb' in freed
        if it[0] == 'wo': return all(x in freed for x in WO_DEP[it[1]])
        return True
    gate = {'n': 10**9}
    def pump(n=1):
        while n > 0 and bgq and legal(bgq[0][0]) and gate['n'] > 0:
            bgq.pop(0)[1](); n -= 1; gate['n'] -= 1
    def set_gate(it, extra):
        idx = [i for i, q in enumerate(bgq) if q[0] == it]
        gate['n'] = (idx[-1] + 1 if idx else 0) + extra
    def force(it):
        while any(q[0] == it for q in bgq):
            assert legal(bgq[0][0]), (it, bgq[0][0])
            bgq.pop(0)[1](); gate['n'] -= 1
    def barrier():
        p("s_barrier")
        if o.get('jitter'): stamp('bar')
        freed.update(pend); pend.clear()
    def inter(ins, every):
        for i, l in enumerate(ins):
            p(l)
            if every and i % every == every - 1: pump(1)
    def slot_base(it): return RING + (pos[it] % NSL) * SL

    def dma(voff, srd, soff, tag, imm=0, flags=''):
        s = f"buffer_load_dwordx4 {voff}, {srd}, {soff} offen"
        if imm: s += f" offset:{imm}"
        if flags: s += ' ' + flags
        p(s + ' lds', tag=tag)

    def q_x():
        for g in range(4):
            for i in range(4):
                def f(g=g, i=i):
                    if i == 0:
                        p(f"""s_xor_b32 {sG1}, {sD}, {g}
                        s_lshl_b32 {sG2}, {sG1}, 17
                        s_add_u32 {sG2}, {sG2}, {sE}
                        s_mul_i32 {sG1}, {sG1}, {4*1040}
                        s_add_u32 m0, {sG1}, {sG0}""")
                    dma(vRow[i], sX, sG2, 'x', imm=i*1040, flags=o['xfl'])
                bgq.append(('x', f))
    def q_chunk(n):
        it = f'c{n}'
        for jj in range(4):
            def f(jj=jj):
                if n < 16:
                    if jj == 0:
                        if n == 8:
                            for r in vWinSrc: p(f"v_subrev_u32 {r}, {sWD}, {r}")
                        p(f"s_add_u32 m0, {sW4K}, {slot_base(it)}")
                    dma(vWinSrc[jj], sWIN, sKC[n & 7], it, imm=jj*1024, flags=o['wfl'])
                else:
                    x = n - 16
                    if jj == 0:
                        p(f"""s_add_u32 {sG0}, {sWDO}, {x*16384}
                        s_mul_i32 {sG1}, {sW}, {4*1040}
                        s_add_u32 m0, {sG1}, {slot_base(it)}""")
                        if x: p(f"v_add_co_u32 v{vWdA}, s[48:49], s50, v{vWdA}\nv_addc_co_u32 v{vWdA+1}, s[48:49], 0, v{vWdA+1}, s[48:49]")
                        p(f"global_load_lds_dwordx4 {vr(vWdA,2)}, off", tag=it)
                    elif jj < 3:
                        dma(vRow[2*jj-1], sHRE, sG0, it, imm=(2*jj-1)*1040, flags=o['wfl'])
                    else:
                        p("s_add_u32 m0, m0, 32")
                        p(f"global_load_lds_dwordx4 {vr(vWdA,2)}, off offset:2048", tag=it)
            bgq.append((it, f))
    def q_wsp(j, tag=None):
        it = f'h{j}'; u, hh = j >> 1, j & 1
        for i in range(8):
            def f(i=i):
                if i == 0:
                    p(f"s_xor_b32 {sG2}, {sWSB}, {(u << 12) + (hh << 7)}")
                    p(f"s_add_u32 m0, {sWSM[0]}, {hh*HB}")
                if i == 4:
                    p(f"s_xor_b32 {sG2}, {sG2}, {1 << 22}")
                    p(f"s_add_u32 m0, {sWSM[1]}, {hh*HB}")
                dma(vWspSrc[i % 4], sWSP, sG2, tag or it, imm=(i % 4) * 1040, flags=o['sfl'])
            bgq.append((it, f))
    def gpf_wsp():
        p(f"""v_lshrrev_b32 v88, 3, v0
        v_lshlrev_b32 v88, 19, v88
        v_and_b32 v89, 7, v0
        v_lshl_add_u32 v88, v89, 7, v88
        s_lshl_b32 {sG1}, {sRB}, 2
        s_and_b32 {sG2}, {sCB}, 3
        s_add_u32 {sG1}, {sG1}, {sG2}
        s_lshl_b32 {sG1}, {sG1}, 12
        s_add_u32 {sG1}, {sG1}, {sW1K}
        s_and_b32 {sG2}, s2, 1
        s_lshl_b32 {sG2}, {sG2}, 22
        s_add_u32 {sG1}, {sG1}, {sG2}""")
        if o['pf0w']: p(f"s_bfm_b64 exec, {64 - o['pf0w']}, {o['pf0w']}")
        p(f"buffer_load_dword v90, v88, {sWSP}, {sG1} offen {o['pffl']}", tag='pf')
        if o['pf0w']: p("s_mov_b64 exec, -1")
        if o['pf_full']:
            p(f"s_xor_b32 {sG1}, {sG1}, {1 << 22}")
            p(f"buffer_load_dword v90, v88, {sWSP}, {sG1} offen {o['pffl']}", tag='pf')
        sch['pipe'] = max(sch['pipe'], p.now) + o['pf_cost']
    def gpf_small():
        assert sch['hmax'] <= 1
        p(f"""s_lshl_b32 {sG1}, {sRB}, 4
        s_and_b32 {sG2}, {sCB}, 3
        s_lshl_b32 {sG2}, {sG2}, 2
        s_add_u32 {sG1}, {sG1}, {sG2}
        s_add_u32 {sG1}, {sG1}, {sW}
        s_and_b32 s4, s2, 1
        v_lshlrev_b32 v88, 7, v0
        s_mul_i32 {sG2}, {sG1}, 3584
        s_mul_i32 s5, s4, 896
        s_add_u32 {sG2}, {sG2}, s5
        s_mov_b64 exec, 0x7f""")
        if o['pf0'] != 2: p(f"buffer_load_dword v90, v88, {sWIN}, {sG2} offen", tag='pf')
        p(f"""s_lshl_b32 {sG2}, {sG1}, 8
        s_lshl_b32 s5, s4, 17
        s_add_u32 {sG2}, {sG2}, s5
        s_and_b32 s5, {sG1}, 6
        s_cmp_eq_u32 s5, 2
        s_cselect_b32 s5, 0x100000, {sG2}
        s_cselect_b32 {sG2}, {sG2}, 0x100000
        s_sub_u32 {sG2}, {sG2}, 512
        s_mov_b64 exec, 3""")
        p(f"buffer_load_dword v90, v88, {sHRE}, s5 offen offset:64", tag='pf')
        p(f"buffer_load_dword v90, v88, {sHIM}, {sG2} offen offset:64", tag='pf')
        p(f"""s_mov_b64 exec, 0xff
        v_lshrrev_b32 v88, 2, v0
        v_lshlrev_b32 v88, 10, v88
        v_and_b32 v89, 3, v0
        v_lshl_add_u32 v88, v89, 7, v88
        s_lshl_b32 {sG2}, {sG1}, 11
        s_lshl_b32 s5, s4, 9
        s_add_u32 {sG2}, {sG2}, s5""")
        p(f"buffer_load_dword v90, v88, {sWOUT}, {sG2} offen", tag='pf')
        p("s_mov_b64 exec, -1")
    Q = {}
    q_x(); Q['x'] = bgq[:]; bgq.clear()
    for n in range(18): q_chunk(n)
    Q['c'] = bgq[:]; bgq.clear()
    for j in range(8): q_wsp(j)
    Q['h'] = bgq[:]; bgq.clear()
    Q['z'] = []; Q['w'] = []
    sch = dict(pipe=0.0, cur=None, cnt=0, need=0, hmax=0, hq=[], hpend=[], hold=False, valu=False)
    landed = {}
    done_h = []
    def issue(qn):
        it, f = Q[qn].pop(0)
        assert legal(it), it
        f()
        t = o['t_win'] if (qn == 'c' and int(it[1:]) < 16) else (o['t_h'] if qn == 'h' else 72)
        sch['pipe'] = max(sch['pipe'], p.now) + t
        landed[it] = sch['pipe'] + o['lat']
        sch['cnt'] = (sch['cnt'] + 1) % 4 if qn != 'z' else 0
        sch['cur'] = qn if sch['cnt'] else None
        if not sch['cur']:
            if it == o['pfs_at'] and not any(q[0] == it for q in Q[qn]): gpf_small()
            if o['pf0w'] < 64 and it == o['pfw_at'] and not any(q[0] == it for q in Q[qn]): gpf_wsp()
    def sforce(qn, it):
        while any(q[0] == it for q in Q[qn]):
            issue(sch['cur'] or qn)
    def swait(it, extra=''):
        p.wait_vm([it], extra)
        p.now = max(p.now, landed.get(it, 0))
    def pick():
        if sch['cur']: return sch['cur']
        cok = Q['c'] and legal(Q['c'][0][0])
        hok = Q['h'] and legal(Q['h'][0][0]) and not sch['hold']
        if cok and int(Q['c'][0][0][1:]) < 8: return 'c'
        if cok and int(Q['c'][0][0][1:]) - sch['need'] < o['lead'] and not (sch['hold'] and int(Q['c'][0][0][1:]) >= 8 + o['hold_c']): return 'c'
        if hok: return 'h'
        if cok and not (sch['hold'] and int(Q['c'][0][0][1:]) >= 8 + o['hold_c']): return 'c'
        if Q['z'] and legal(Q['z'][0][0]): return 'z'
        if Q['w'] and legal(Q['w'][0][0]): return 'w'
        return None
    def tick():
        for j in sch['hpend'][:]:
            if p.lg_complete(f'h{j}'): freed.add(f'h{j}'); sch['hpend'].remove(j)
            elif (sch['valu'] or o['hwait']) and p.now >= sch['ht'] + 120:
                p.wait_lg(f'h{j}'); freed.add(f'h{j}'); sch['hpend'].remove(j)
        if sch['hq']:
            for _ in range(o['hrate']):
                l, j = sch['hq'].pop(0)
                p(l, tag=f'h{j}')
            if not sch['hq']: sch['hpend'].append(j); sch['ht'] = p.now
        else:
            j = len(done_h)
            if j < sch['hmax'] and not any(q[0] == f'h{j}' for q in Q['h']) and p.now >= landed[f'h{j}']:
                start_h(j)
        urgent = Q['c'] and int(Q['c'][0][0][1:]) < 8
        if sch['pipe'] - p.now < (o['bmax_z2'] if urgent else o['bmax']):
            qn = pick()
            if qn: issue(qn)
    def start_h(j):
        done_h.append(j)
        sforce('h', f'h{j}')
        swait(f'h{j}')
        for k in range(8):
            b = 32 * j + 4 * k
            sch['hq'].append((f"ds_read_b64 {ar(b,2)}, {vWspRd} offset:{(j&1)*HB + 16*k}", j))
            sch['hq'].append((f"ds_read_b64 {ar(b+2,2)}, {vWspRd} offset:{(j&1)*HB + 16*k+256}", j))
    def fg(ins):
        sch['valu'] = True
        for l in ins:
            p(l); tick()
        sch['valu'] = False
    def drain_h(upto):
        sch['valu'] = True
        while sch['hq'] or sch['hpend'] or len(done_h) < upto:
            if not sch['hq'] and not sch['hpend'] and len(done_h) < upto:
                start_h(len(done_h))
            if not sch['hq']: p.now += 50
            tick()
        sch['valu'] = False

    p.raw(HEADER)
    p.raw(f"; @launch grid=(256,1,1) block=(256,1,1) lds={LDS_TOTAL}")
    p.raw('.amdgcn_target "amdgcn-amd-amdhsa--gfx950"')
    p.raw(f".text\n.globl {NAME}\n.p2align 8\n.type {NAME},@function\n{NAME}:")
    nl = (o['code_size'] + 32 * 128 - 1) // (32 * 128)
    sizes = dict(X=2048*1024+64, HRE=512*1024+64, HIM=512*1024+64, WIN=512*3584, WSP=2048*4096, WOUT=896*1024,
                 OUT=2048*1024, WS=WS_SIZE, DBG=256, BSP=4096, GATE=1024+64)
    p(f"""s_cmp_ge_u32 s2, 256
    s_cbranch_scc1 L_end
    s_load_dwordx2 s[8:9], s[0:1], 0
    s_load_dwordx2 s[20:21], s[0:1], 48
    s_load_dwordx2 s[24:25], s[0:1], 56
    s_getpc_b64 s[4:5]
    s_lshr_b32 {sB}, s2, 3
    s_mul_i32 {sA}, {sB}, {nl}
    v_min_u32 v15, {nl-1}, v0
    v_add_lshl_u32 v15, v15, {sA}, 7
    v_min_u32 v15, {o['code_size'] - 64}, v15
    v_lshrrev_b32 v14, 6, v0""")
    if o['code_pf']: p("global_load_dword v27, v15, s[4:5]", tag='cpf')
    p(f"""v_readfirstlane_b32 {sW}, v14
    v_and_b32 v0, 63, v0
    s_lshr_b32 {sROT}, s2, 5
    s_and_b32 {sA}, s2, 6
    s_lshl_b32 {sA}, {sA}, 2
    s_add_u32 {sRB}, {sA}, {sROT}
    s_and_b32 {sD}, {sB}, 3
    v_lshlrev_b32 {vL16}, 4, v0
    s_lshl_b32 {sA}, {sROT}, 5
    v_xor_b32 v14, {sA}, {vL16}
    v_add_u32 {vRow[0]}, 64, v14
    v_add_u32 {vRow[1]}, 48, v14
    v_add_u32 {vRow[2]}, 32, v14
    v_add_u32 {vRow[3]}, 16, v14
    s_mov_b32 s10, {sizes['X']}
    s_mov_b32 s11, 0x20000
    s_lshl_b32 {sE}, {sW}, 19
    s_lshl_b32 {sA}, {sRB}, 12
    s_add_u32 {sE}, {sE}, {sA}
    s_mul_i32 {sG0}, {sW}, {SL}
    s_waitcnt lgkmcnt(0)
    s_sub_u32 s8, s8, 64
    s_subb_u32 s9, s9, 0""")
    for _ in range(4): issue('x')
    p(f"s_mov_b32 s22, {sizes['WIN']}\ns_mov_b32 s23, 0x20000")
    if o['pf0']:
        p(f"""s_lshl_b32 {sA}, {sRB}, 2
        s_add_u32 {sA}, {sA}, {sD}
        s_lshl_b32 {sA}, {sA}, 2
        s_add_u32 {sA}, {sA}, {sW}
        s_mul_i32 {sA}, {sA}, 3584
        s_and_b32 {sC}, s2, 1
        s_mul_i32 {sC}, {sC}, 896
        s_add_u32 {sA}, {sA}, {sC}
        v_lshrrev_b32 v14, 3, v0
        v_mul_u32_u24 v14, 768, v14
        v_lshl_add_u32 v14, v0, 7, v14
        s_mov_b64 exec, {'0x7f7f' if o['pf0'] == 2 else '0x7f00'}""")
        p(f"buffer_load_dword v27, v14, {sWIN}, {sA} offen", tag='pf')
        p("s_mov_b64 exec, -1")
    p(f"s_mov_b32 s26, {sizes['WSP']}\ns_mov_b32 s27, 0x20000")
    def pf0w():
        p(f"""s_lshl_b32 {sA}, {sRB}, 2
        s_add_u32 {sA}, {sA}, {sD}
        s_lshl_b32 {sA}, {sA}, 2
        s_add_u32 {sA}, {sA}, {sW}
        s_lshl_b32 {sA}, {sA}, 10
        s_and_b32 {sC}, s2, 1
        s_lshl_b32 {sC}, {sC}, 22
        s_add_u32 {sA}, {sA}, {sC}
        v_lshrrev_b32 v14, 3, v0
        v_lshlrev_b32 v14, 19, v14
        v_and_b32 v15, 7, v0
        v_lshl_add_u32 v14, v15, 7, v14
        s_bfm_b64 exec, {o['pf0w'] % 64}, 0""".replace('s_bfm_b64 exec, 0, 0', 's_nop 0'))
        p(f"buffer_load_dword v27, v14, {sWSP}, {sA} offen", tag='pf')
        p("s_mov_b64 exec, -1")
    if o['pf0w'] and not o['pf0w_late']: pf0w()
    for kname, off in KOFF.items():
        if kname not in ('X', 'WIN', 'WSP'): p(f"s_load_dwordx2 s[{SRD[kname]}:{SRD[kname]+1}], s[0:1], {off}")
    p("s_memrealtime s[56:57]")
    for _ in range(o['x_first']): issue('x')
    if o['pf0w'] and o['pf0w_late']: pf0w()
    p(f"""s_and_b32 {sA}, s2, 1
    s_lshl_b32 {sCB}, {sA}, 2
    s_add_u32 {sCB}, {sCB}, {sD}
    s_mov_b32 {sOM}, {sW}
    s_lshl_b32 {sW4K}, {sW}, 12
    s_lshl_b32 {sROT2}, {sROT}, 1
    s_lshl_b32 {sW1K}, {sW}, 10
    v_and_b32 {vC}, 15, v0
    v_lshrrev_b32 {vQ}, 4, v0""")
    for kname, b in SRD.items():
        if kname not in ('X', 'WIN', 'WSP'): p(f"s_mov_b32 s{b+2}, {sizes[kname]}\ns_mov_b32 s{b+3}, 0x20000")
    p(f"""s_waitcnt lgkmcnt(0)
    s_or_b32 {sA}, s2, {sW}
    s_cbranch_scc1 L_notag
    s_or_b32 {sT0}, {sT0}, 1
    s_mul_i32 {sA}, {sT0}, 0x9e3779b1
    s_add_u32 {sT1}, {sT1}, {sA}
    v_mov_b32 v18, {sT0}
    v_mov_b32 v19, {sT1}
    s_mov_b64 exec, 1
    """)
    p(f"buffer_store_dwordx2 v[18:19], off, {sDBG}, 0 sc1", tag='untracked')
    p("s_mov_b64 exec, -1\nL_notag:")
    stamp('start')
    if o['clr_at'] == 'first':
        p(f"""s_lshl_b32 {sA}, {sRB}, 2
        s_add_u32 {sA}, {sA}, {sOM}
        s_mul_i32 {sA}, {sA}, {28*1024}
        s_add_u32 {sA}, {sA}, {WS_H}
        s_lshl_b32 {sB}, {sCB}, 10
        s_add_u32 {sB}, {sB}, {sA}
        s_lshl_b32 {sC}, {sCB}, 9
        s_add_u32 {sC}, {sC}, {sA}
        s_add_u32 {sC}, {sC}, {24*1024}
        v_mov_b32 v168, -1
        v_mov_b32 v169, -1
        v_mov_b32 v170, -1
        v_mov_b32 v171, -1""")
        for i in range(3):
            if i: p(f"s_add_u32 {sB}, {sB}, 8192")
            p(f"buffer_store_dwordx4 v[168:171], {vL16}, {sWS}, {sB} offen sc1", tag='clr')
        p("s_mov_b32 exec_hi, 0")
        p(f"buffer_store_dwordx4 v[168:171], {vL16}, {sWS}, {sC} offen sc1", tag='clr')
        p("s_mov_b64 exec, -1")
    def tlbw():
        sh = o['tlb_sh']
        if o['tlb_w0']: p(f"s_cmp_lg_u32 {sW}, 0\ns_cbranch_scc1 L_notlb")
        tg = 'untracked' if o['tlb_w0'] else 'tlb'
        if sh < 18:
            p(f"v_lshl_add_u32 v26, {sW}, 6, v0\nv_lshlrev_b32 v26, {sh}, v26", tag=tg)
        else:
            p(f"v_lshlrev_b32 v26, {sh}, v0\ns_mov_b64 exec, {hex((1 << (1 << (24 - sh))) - 1) if sh > 18 else -1}", tag=tg)
        for r_ in o['tlb_list']:
            p(f"buffer_load_dword v27, v26, {r_}, 0 offen offset:128 sc1", tag=tg)
        p("s_mov_b64 exec, -1", tag=tg)
        if o['tlb_w0']: p("L_notlb:")
    if o['tlbw'] == 1: tlbw()
    p(f"""
    s_lshl_b32 {sA}, {sW}, 7
    v_add_u32 v15, {sA}, {vQ}
    v_mul_u32_u24 v16, 3584, v15
    s_xor_b32 {sB}, {sCB}, {o['zx']}
    s_mul_i32 {sA}, {sB}, 224
    s_and_b32 {sB}, {sB}, 1
    s_mul_i32 {sWD}, {sB}, {384*o['zx']}
    s_add_u32 {sWD}, {sWD}, {1792 - 192*o['zx']}
    s_lshl_b32 {sC}, {sB}, 5
    s_sub_u32 {sA}, {sA}, {sC}
    s_add_u32 {sA}, {sA}, 1792
    s_and_b32 {sB}, {sW}, 1
    s_lshl_b32 {sB}, {sB}, 3
    v_lshl_add_u32 v14, {vQ}, 1, {sB}
    v_xor_b32 v14, v14, {vC}
    v_lshlrev_b32 v14, 4, v14
    v_add3_u32 {vWinSrc[0]}, v14, v16, {sA}
    v_add_u32 {vWinSrc[1]}, {4*3584-1024}, {vWinSrc[0]}
    v_add_u32 {vWinSrc[2]}, {4*3584-1024}, {vWinSrc[1]}
    v_add_u32 {vWinSrc[3]}, {4*3584-1024}, {vWinSrc[2]}
    """)
    for n in range(8):
        p(f"s_xor_b32 {sA}, {sROT}, {n}\ns_mul_i32 {sKC[n]}, {sA}, {16*3584}")
    if o['c0_early']: sforce('c', 'c0')
    for b in (12, 16, 48): p(f"s_sub_u32 s{b}, s{b}, 64\ns_subb_u32 s{b+1}, s{b+1}, 0")
    setup = lines(f"""
    ; z2n store voffset: (l>>5)*1024 + (2u+p)*256 + c*16, u=(q&1), p=rb&1
    v_lshrrev_b32 v14, 1, {vQ}
    v_lshlrev_b32 v14, 10, v14
    v_and_b32 v15, 1, {vQ}
    v_lshl_add_u32 v14, v15, 9, v14
    v_lshl_add_u32 v14, {vC}, 4, v14
    s_and_b32 {sA}, {sRB}, 1
    s_lshl_b32 {sA}, {sA}, 8
    v_add_u32 {vZst}, {sA}, v14
    s_lshl_b32 {sA}, {sCB}, 2
    s_add_u32 {sA}, {sA}, {sW}
    s_lshl_b32 {sZB}, {sA}, 17
    s_lshl_b32 {sZF}, {sA}, 8
    s_add_u32 {sZF}, {sZF}, {WS_FC}
    s_lshr_b32 {sA}, {sRB}, 1
    s_lshl_b32 {sA}, {sA}, 11
    s_add_u32 {sZST}, {sZB}, {sA}
    s_xor_b32 {sZST}, {sZST}, {o['zx'] << 19}
    s_lshl_b32 {sA}, {sRB}, 2
    s_add_u32 {sA}, {sA}, {sOM}
    s_mul_i32 {sA}, {sA}, {28*1024}
    s_add_u32 {sA}, {sA}, {WS_H}
    s_lshl_b32 {sB}, {sCB}, 10
    s_add_u32 {sHST}, {sA}, {sB}
    s_lshl_b32 {sB}, {sCB}, 9
    s_add_u32 {sHS1}, {sA}, {sB}
    s_add_u32 {sHS1}, {sHS1}, {24*1024}
    s_mov_b32 s66, -1
    s_mov_b32 s67, 0
    """)
    for l in setup: p(l)

    def z2n_stores(base, tag, which=range(4)):
        for i in which:
            if i: p(f"s_add_u32 {sZST}, {sZST}, 32768")
            if i == 3: p(f"s_mov_b64 exec, {sLO32}")
            p(f"buffer_store_dwordx4 {vr(base(i))}, {vZst}, {sWS}, {sZST} offen {o['zfl']}", tag=tag)
            if i == 3: p("s_mov_b64 exec, -1")
    def h_store(i, reg, tag):
        op = f"buffer_store_dwordx4 {vr(reg)}"
        if tag == 'clr' and o['clr_dw']: op = f"buffer_store_dword v{reg}"
        if tag == 'clr' and o['clr_dw'] == 2: return
        if i < 3:
            p(f"s_add_u32 {sA}, {sHST}, {8192*i}")
            p(f"{op}, {vL16}, {sWS}, {sA} offen {o['clrfl'] if tag == 'clr' else o['hfl']}", tag=tag)
        else:
            p(f"s_mov_b64 exec, {sLO32}")
            p(f"{op}, {vL16}, {sWS}, {sHS1} offen {o['clrfl'] if tag == 'clr' else o['hfl']}", tag=tag)
            p("s_mov_b64 exec, -1")

    setup2 = lines(f"""
    v_lshrrev_b32 v14, 2, {vC}
    v_lshl_add_u32 v15, {vQ}, 4, v14
    v_lshlrev_b32 v15, 8, v15
    v_and_b32 v16, 3, {vC}
    v_lshl_add_u32 v15, v16, 3, v15
    v_and_b32 v16, 1, {vQ}
    v_lshl_add_u32 v16, v16, 2, v14
    s_and_b32 {sB}, {sCB}, 1
    s_and_b32 {sC}, {sW}, 1
    s_mul_i32 {sA}, {sC}, 6
    s_add_u32 {sA}, {sA}, {sB}
    s_lshl_b32 {sC}, {sC}, 1
    s_sub_u32 {sC}, 1, {sC}
    s_lshl_b32 {sB}, {sB}, 1
    s_sub_u32 {sB}, 1, {sB}
    s_mul_i32 {sB}, {sB}, {o['zx']}
    """)
    for j in range(4):
        if j: setup2.append(f"s_add_u32 {sA}, {sA}, {sC}")
        setup2 += lines(f"""v_xor_b32 v17, {sA}, v16
        v_lshl_add_u32 {vWinRd[j]}, v17, 5, v15
        s_add_u32 s4, {sA}, {sB}
        v_xor_b32 v17, s4, v16
        v_lshl_add_u32 {vWinRd2[j]}, v17, 5, v15""")
    setup2 += lines(f"""
    v_mul_u32_u24 v14, 1040, {vC}
    v_lshl_add_u32 {vWdRd}, {vQ}, 8, v14
    s_mul_i32 {sA}, {sW}, {SL}
    v_add_u32 {vXrd1}, {sA}, {vWdRd}
    s_xor_b32 {sB}, {sW}, 1
    s_mul_i32 {sA}, {sB}, {SL}
    v_add_u32 {vXrd1p}, {sA}, {vWdRd}
    s_mul_i32 {sA}, {sB}, 3072
    s_add_u32 {sA}, {sA}, {VASM}
    v_add_u32 {vExW}, {sA}, {vL16}
    s_mul_i32 {sA}, {sW}, 3072
    s_add_u32 {sA}, {sA}, {VASM}
    v_add_u32 {vExR}, {sA}, {vL16}
    v_mul_u32_u24 v14, {4*1040}, {vC}
    v_lshrrev_b32 v15, 2, {vC}
    v_lshl_add_u32 v14, v15, 4, v14
    v_lshl_add_u32 v14, {vQ}, 8, v14
    s_mul_i32 {sA}, {sOM}, 1040
    v_add_u32 {vXrd2}, {sA}, v14
    s_xor_b32 {sB}, {sOM}, 1
    s_mul_i32 {sA}, {sB}, 1040
    v_add_u32 {vXrd2p}, {sA}, v14
    """)
    for l in setup2: p(l)
    setup3 = lines(f"""
    s_lshl_b32 {sWDO}, {o['fcb'] if o.get('fcb') is not None else sCB}, 15
    s_add_u32 {sWDO}, {sWDO}, {sW4K}
    v_cmp_gt_u32 vcc, 32, v0
    v_mov_b32 v14, s16
    v_mov_b32 v15, s12
    v_cndmask_b32 v14, v14, v15, vcc
    v_mov_b32 v16, s17
    v_mov_b32 v15, s13
    v_cndmask_b32 v16, v16, v15, vcc
    v_subrev_u32 v15, 64, {vRow[0]}
    v_and_b32 v15, 511, v15
    v_add3_u32 v15, v15, 64, {sWDO}
    v_add_co_u32 v{vWdA}, vcc, v14, v15
    v_addc_co_u32 v{vWdA+1}, vcc, 0, v16, vcc
    v_and_b32 v14, 1, {vC}
    v_cmp_eq_u32 vcc, 1, v14
    v_and_b32 v14, 1, {vQ}
    v_cndmask_b32 v15, v14, {vQ}, vcc
    v_add_u32 v14, 2, v14
    v_add_u32 v16, {vQ}, {vC}
    v_and_b32 v16, 3, v16
    v_cndmask_b32 v14, v14, v16, vcc
    v_mul_u32_u24 v16, 1040, {vC}
    v_lshl_add_u32 {vWdRd}, v15, 8, v16
    v_lshl_add_u32 {vWdRdS}, v14, 8, v16
    s_lshl_b32 {sA}, {sW}, 2
    v_add_u32 v15, {sA}, {vQ}
    v_mul_u32_u24 v15, {VT1}, v15
    v_lshl_add_u32 {vVad[0]}, {vC}, 4, v15""")
    setup3 += lines(f"""
    s_mov_b32 {sA}, {GATE}
    v_lshl_add_u32 {vGateRd}, {vQ}, 8, {sA}
    v_lshrrev_b32 v15, 5, v0
    v_bfe_u32 v16, v0, 3, 2
    v_xor_b32 v16, v16, v15
    v_lshlrev_b32 v16, 8, v16
    v_lshl_add_u32 v16, v15, 19, v16
    s_and_b32 {sA}, {sROT2}, 7
    v_and_b32 v14, 7, v0
    v_xor_b32 v14, {sA}, v14
    v_lshl_add_u32 v14, v14, 4, v16
    v_add_u32 {vWspSrc[0]}, {sW1K}, v14
    v_add_u32 {vWspSrc[1]}, {2*524288-1040}, {vWspSrc[0]}
    v_add_u32 {vWspSrc[2]}, {2*524288-1040}, {vWspSrc[1]}
    v_add_u32 {vWspSrc[3]}, {2*524288-1040}, {vWspSrc[2]}
    s_lshl_b32 {sA}, {'0' if o.get('frb') else sRB}, 2
    s_add_u32 {sA}, {sA}, {sOM}
    s_lshl_b32 {sWSB}, {sA}, 12
    s_lshr_b32 {sA}, {sROT2}, 3
    s_lshl_b32 {sA}, {sA}, 7
    s_add_u32 {sWSB}, {sWSB}, {sA}
    s_and_b32 {sA}, {sCB}, {o['hm']}
    s_lshl_b32 {sB}, {sA}, 22
    s_add_u32 {sWSB}, {sWSB}, {sB}
    s_mul_i32 {sB}, {sA}, {4*1040}
    s_mul_i32 {sC}, {sW}, {SL}
    s_add_u32 {sWSM[0]}, {sC}, {sB}
    s_sub_u32 {sWSM[1]}, {sC}, {sB}
    s_add_u32 {sWSM[1]}, {sWSM[1]}, {4*1040}
    v_lshrrev_b32 v14, 1, {vC}
    v_mul_u32_u24 v14, 1040, v14
    v_and_b32 v15, 1, {vC}
    v_lshl_add_u32 v14, v15, 9, v14
    v_lshrrev_b32 v16, 1, {vQ}
    v_xor_b32 v16, v16, v15
    v_lshl_add_u32 v14, v16, 7, v14
    v_and_b32 v15, 1, {vQ}
    v_lshl_add_u32 v14, v15, 3, v14
    v_add_u32 {vWspRd}, {sC}, v14
    v_and_b32 v14, 1, {vC}
    v_cmp_ne_u32 {sM1}, 0, v14
    v_and_b32 v14, 2, {vC}
    v_cmp_ne_u32 {sM2}, 0, v14
    v_cmp_gt_u32 {sLT4}, 4, {vC}
    v_cmp_eq_u32 {sC0}, 0, {vC}
    v_and_b32 v17, 3, {vC}
    v_lshl_add_u32 v17, {vQ}, 2, v17
    v_lshlrev_b32 {vSt0}, 4, v17
    s_lshl_b32 {sA}, {sRB}, 13
    s_lshl_b32 {sB}, {sW}, 8
    s_add_u32 {sF}, {sA}, {sB}
    s_add_u32 {sF}, {sF}, {WS_ST}
    """)
    coefc = [f"v_lshlrev_b32 v14, 2, {vQ}"]
    for k in range(4):
        coefc += lines(f"""v_add_u32 v15, {k}, v14
        v_mul_u32_u24 v15, v15, {vC}
        v_and_b32 v15, 15, v15
        v_cvt_f32_u32 v15, v15
        v_mul_f32 v15, {fh(1.0/16)}, v15
        v_cos_f32 v{PK+k}, v15
        v_sin_f32 v{PK+4+k}, v15""")
    coefc += lines(f"""v_cvt_pk_bf16_f32 v{COEF}, v{PK}, v{PK+1}
    v_cvt_pk_bf16_f32 v{COEF+1}, v{PK+2}, v{PK+3}
    v_cvt_pk_bf16_f32 v{COEF+2}, v{PK+4}, v{PK+5}
    v_cvt_pk_bf16_f32 v{COEF+3}, v{PK+6}, v{PK+7}
    v_xor_b32 v{COEF+4}, 0x80008000, v{COEF+2}
    v_xor_b32 v{COEF+5}, 0x80008000, v{COEF+3}
    v_mov_b32 v{COEF+6}, v{COEF}
    v_mov_b32 v{COEF+7}, v{COEF+1}
    v_mov_b32 v{COEF+8}, v{COEF}
    v_mov_b32 v{COEF+9}, v{COEF+1}
    v_mov_b32 v{COEF+10}, v{COEF+4}
    v_mov_b32 v{COEF+11}, v{COEF+5}
    v_mov_b32 v{COEF+12}, v{COEF+4}
    v_mov_b32 v{COEF+13}, v{COEF+5}
    v_xor_b32 v{COEF+14}, 0x80008000, v{COEF}
    v_xor_b32 v{COEF+15}, 0x80008000, v{COEF+1}""")
    ffill = lines(f"""s_lshl_b32 {sA}, {sW}, 5
    s_add_u32 {sA}, {sA}, {sRB}
    s_xor_b32 {sB}, {sA}, 32
    s_cmp_lt_u32 {sCB}, 4
    s_cselect_b32 s4, 0, 0x80000000
    s_and_b32 {sC}, {sW}, 1
    s_lshl_b32 {sC}, {sC}, 6
    v_lshl_add_u32 v164, {vQ}, 2, {sC}
    v_cvt_f32_u32 v164, v164""")
    for u in range(2):
        ffill += lines(f"""v_lshl_add_u32 v165, {vC}, 7, {[sA, sB][u]}
        v_cvt_f32_u32 v165, v165
        v_mul_f32 v165, {fh(1.0/2048)}, v165
        v_xor_b32 v165, s4, v165
        v_mul_f32 v166, v164, v165""")
        for kl in range(4):
            d = FF + 16 * u + 4 * kl
            for i in range(4): ffill.append(f"v_fmamk_f32 v{168+i}, v165, {fh(float(16*kl+i))}, v166")
            for i in range(4): ffill += [f"v_cos_f32 v{d+i}, v{168+i}", f"v_sin_f32 v{168+i}, v{168+i}"]
            for i in range(4): ffill.append(f"v_cvt_pk_bf16_f32 v{d+i}, v{d+i}, v{168+i}")
    for l in setup3 + coefc + (ffill if o['f_where'] == 0 else []): p(l)
    sforce('x', 'x')
    sforce('c', f"c{o['pre_c']}")
    if o['tlbw'] == 2: tlbw()
    p(f"s_mov_b32 m0, {GATE}")
    dma(vRow[0], sGATE, '0', 'gate')
    p("s_mov_b32 s50, 16384")
    def clears():
        for i in range(4): p(f"v_mov_b32 v{FLG+4+i}, -1")
        for i in range(4): h_store(i, FLG + 4, 'clr')
    if o['clr_at'] == 'start': clears()
    if isinstance(o['clr_at'], list):
        for i in range(4): p(f"v_mov_b32 v{232+i}, -1")
    if o['f_where'] == 1:
        for l in ffill: p(l)

    p.wait_vm('x')
    p.now = 0.0; sch['pipe'] = 400.0; landed['c0'] = 0; landed['c1'] = 400; sch['hold'] = o['hold']
    barrier()
    stamp('x_in')
    sforce('c', 'c2')
    xset2 = []
    for n in range(16):
        xset2 += [f"ds_read_b128 {ar(XF1+4*n)}, {vXrd1} offset:{16*n}", f"ds_read_b128 {ar(XF1P+4*n)}, {vXrd1p} offset:{16*n}"]
    for l in xset2[:4]: p(l, tag='x2')
    del xset2[:4]
    for n in range(16):
        xset2 += [f"ds_read_b128 {ar(XF2+4*n)}, {vXrd2} offset:{16*n}", f"ds_read_b128 {ar(XF2P+4*n)}, {vXrd2p} offset:{16*n}"]

    adj = {'win': 0, 'win2': 0, 'wd': 0}
    def zone(kind, regs, slot):
        want = RING + ((slot - RING) // (3 * SL)) * 3 * SL
        if want != adj[kind]:
            d = want - adj[kind]
            for r in regs:
                p(f"v_add_u32 {r}, {d}, {r}" if d > 0 else f"v_subrev_u32 {r}, {-d}, {r}")
            adj[kind] = want
        return slot - want
    def win_reads(n, ks, fb):
        slot = slot_base(f'c{n}')
        r = []
        if n < 16:
            wr = vWinRd2 if n < 8 else vWinRd
            off = zone('win2' if n < 8 else 'win', wr, slot)
            for j in range(4):
                for h in range(2):
                    r.append(f"ds_read_b64_tr_b16 {vr(fb+4*j+2*h,2)}, {wr[j]} offset:{off + ks*2048 + h*1024}")
        else:
            off = zone('wd', [vWdRd, vWdRdS], slot)
            for j in range(4):
                r.append(f"ds_read_b128 {vr(fb+4*j)}, {vWdRdS if j & 1 else vWdRd} offset:{off + 16*(2*ks+(j>>1))}")
            r.append(f"ds_read_b128 {vr(fb+16)}, {vGateRd} offset:{16*(8*(n-16)+ks)}")
        return r
    def win_mfma(n, ks, fb):
        r = []
        first = ks == 0 and n in (0, 8, 16)
        def c(reg): return '0' if first else vr(reg)
        if n < 16:
            i_ = 4 * (2 * (n & 7) + ks)
            Z = Z2 if n < 8 else Z1
            for j in range(4):
                for xb, a_ in (((XF1 if n < 8 else XF2), Z + 4 * j), ((XF1P if n < 8 else XF2P), Z + 4 * (6 - j))):
                    if j == 3 and xb in (XF1P, XF2P): continue
                    ops = (ar(xb + i_), vr(fb + 4 * j)) if n < 8 else (vr(fb + 4 * j), ar(xb + i_))
                    r.append(f"v_mfma_f32_16x16x32_bf16 {vr(a_)}, {ops[0]}, {ops[1]}, {c(a_)}")
        else:
            for j in range(4):
                acc = ACA + 4 * (n - 16) + 8 * (j & 1)
                r.append(f"v_mfma_f32_16x16x32_bf16 {vr(acc)}, {ar(XF2+4*(2*ks+(j>>1)))}, {vr(fb+4*j)}, {'0' if ks == 0 and j < 2 else vr(acc)}")
            r.insert(2, f"v_mfma_f32_16x16x32_bf16 {vr(ACA+16)}, {vr(fb+16)}, {ar(XF2+4*(8*(n-16)+ks))}, {c(ACA+16)}")
        return r

    def sync_chunk(n, hooks):
        it = f'c{n}'
        sforce('c', it)
        if ('pre', n) in hooks: hooks[('pre', n)]()
        swait(it)
        sch['need'] = n + 1
        if n == 16:
            p(f"""s_or_b32 {sA}, {sW}, {sCB}
            s_cbranch_scc1 L_nopatch
            v_mov_b32 v168, 0xbf803f80
            v_mov_b32 v169, v168
            v_mov_b32 v170, v168
            v_mov_b32 v171, v168
            v_add_u32 v167, {slot_base(it) + 512}, {vL16}
            s_mov_b64 exec, {sLO32}
            ds_write_b128 v167, v[168:171]
            s_mov_b64 exec, -1
            s_waitcnt lgkmcnt(0)
            L_nopatch:""", tag='untracked')
        barrier()
        if ('post', n) in hooks: hooks[('post', n)]()
    pf = []; pfc = [0.0]
    def flush_pf():
        while pf:
            x = pf.pop(0)
            x() if callable(x) else fg([x])
    def pipeline(chunks, hooks):
        S = [(n, ks) for n in chunks for ks in range(2 if n < 16 else 8)]
        def fbuf(i): return (FB if S[i][0] < 16 else FBA)[i % 3]
        for j in range(2):
            if S[j][1] == 0: sync_chunk(S[j][0], hooks)
            for l in win_reads(S[j][0], S[j][1], fbuf(j)): p(l, tag=S[j]); tick()
        for i, (n, ks) in enumerate(S):
            nks = 2 if n < 16 else 8
            if (n, ks) == (15, 0): flush_pf()
            p.wait_lg(S[i])
            if ks == nks - 1: pend.add(f'c{n}')
            if not xset2 and 'x' not in freed and p.lg_complete('x2'): pend.add('x')
            rd = []
            if i + 2 < len(S):
                if S[i+2][1] == 0: sync_chunk(S[i+2][0], hooks)
                rd = [(l, S[i+2]) for l in win_reads(S[i+2][0], S[i+2][1], fbuf(i + 2))]
            if xset2:
                k2 = o['xrate']
                rd = [(l, 'x2') for l in xset2[:k2]] + rd; del xset2[:k2]
            ms = win_mfma(n, ks, fbuf(i))
            per = (len(rd) + len(ms) - 1) // len(ms)
            for j, m in enumerate(ms):
                t0 = p.now
                p(m)
                nr = 0
                for _ in range(per):
                    if rd:
                        l, t = rd.pop(0); p(l, tag=t); nr += 1
                t1 = p.now
                pfc[0] += o['pf_rate'][n >= 16]
                while pf and pfc[0] >= 1:
                    x = pf.pop(0); pfc[0] -= 1
                    x() if callable(x) else p(x)
                if not pf: pfc[0] = 0
                p.now = t0 + max(t1 - t0, 8 + 5 * nr + (p.now - t1), 16)
                tick()
            if ('step', n, ks) in hooks: hooks[('step', n, ks)]()
            if ks == nks - 1 and ('done', n) in hooks: hooks[('done', n)]()

    def exch_write(Z):
        for i in range(3): p(f"ds_write_b128 {vExW}, {vr(Z+16+4*i)} offset:{1024*i}")
        p("s_waitcnt lgkmcnt(0)")
    def exch_read(Z, lab):
        for i in range(3): p(f"ds_read_b128 {vr(Z+16+4*i)}, {vExR} offset:{1024*i}", tag=lab)
    def exch_fix(Z, lab):
        p.wait_lg(lab)
        p(f"s_bitcmp0_b32 {sW}, 0\ns_cbranch_scc1 {lab}")
        for j in range(3):
            for i in range(4): p(f"v_swap_b32 v{Z+4*j+i}, v{Z+4*(6-j)+i}", tag='untracked')
        p(f"{lab}:")
    C0 = -2.0 * math.sqrt(2.0 / math.pi) * math.log2(math.e)
    C1 = C0 * 0.044715
    def gelu(base, n, scalar=False):
        if scalar:
            r = [f"s_mov_b32 s4, {fh(C1)}", f"v_mov_b32 v22, {fh(C0)}"]
            for g in range(0, n, 4):
                for i in range(4): r.append(f"v_mul_f32 v{14+i}, v{base+g+i}, v{base+g+i}")
                for i in range(4): r.append(f"v_fma_f32 v{14+i}, v{14+i}, s4, v22")
                for i in range(4): r.append(f"v_mul_f32 v{14+i}, v{14+i}, v{base+g+i}")
                for i in range(4): r.append(f"v_exp_f32 v{14+i}, v{14+i}")
                for i in range(4): r.append(f"v_add_f32 v{14+i}, 1.0, v{14+i}")
                for i in range(4): r.append(f"v_rcp_f32 v{14+i}, v{14+i}")
                for i in range(4): r.append(f"v_mul_f32 v{base+g+i}, v{base+g+i}, v{14+i}")
            return r
        r = lines(f"""s_mov_b32 s4, {fh(C1)}
        s_mov_b32 s5, {fh(C1)}
        v_mov_b32 v22, {fh(C0)}
        v_mov_b32 v23, {fh(C0)}""")
        for g in range(0, n, 4):
            x = [vr(base+g, 2), vr(base+g+2, 2)]; t = [vr(14, 2), vr(16, 2)]
            for i in range(2): r.append(f"v_pk_mul_f32 {t[i]}, {x[i]}, {x[i]}")
            for i in range(2): r.append(f"v_pk_fma_f32 {t[i]}, {t[i]}, s[4:5], v[22:23]")
            for i in range(2): r.append(f"v_pk_mul_f32 {t[i]}, {t[i]}, {x[i]}")
            for i in range(4): r.append(f"v_exp_f32 v{14+i}, v{14+i}")
            for i in range(2): r.append(f"v_pk_add_f32 {t[i]}, {t[i]}, 1.0 op_sel_hi:[1,0]")
            for i in range(4): r.append(f"v_rcp_f32 v{14+i}, v{14+i}")
            for i in range(2): r.append(f"v_pk_mul_f32 {x[i]}, {x[i]}, {t[i]}")
        return r
    def rowred(regs, rors):
        return [f"v_add_f32_dpp {r}, {r}, {r} row_ror:{k} row_mask:0xf bank_mask:0xf" for k in rors for r in regs]

    def get_tag():
        p.wait_vm('tag')
        p(f"""s_mov_b32 {sCNT}, 0
        L_tag:
        v_readfirstlane_b32 {sT0}, v{vTag}
        v_readfirstlane_b32 {sT1}, v{vTag+1}
        s_cmp_lg_u32 {sT0}, 0
        s_cbranch_scc1 L_tagok
        s_add_u32 {sCNT}, {sCNT}, 1
        s_cmp_ge_u32 {sCNT}, {SPIN_LIMIT}
        s_cbranch_scc1 L_tagok""")
        p(f"buffer_load_dwordx2 {vr(vTag,2)}, off, {sDBG}, 0 sc1", tag='untracked')
        p("""s_waitcnt vmcnt(0)
        s_branch L_tag
        L_tagok:""")
    def flag_store(base):
        p(f"""s_lshl_b32 {sA}, s2, 3
        s_add_u32 {sA}, {sA}, {base}
        s_cmp_eq_u32 {sW}, 0
        s_cselect_b32 {sA}, {sA}, {WS_SIZE}
        v_mov_b32 v18, {sT0}
        v_mov_b32 v19, {sT1}
        s_mov_b64 exec, 1""")
        p(f"buffer_store_dwordx2 v[18:19], off, {sWS}, {sA} sc1", tag='flag')
        p("s_mov_b64 exec, -1")
    def flag_issue(base, r, tag):
        p(f"s_mov_b32 {sA}, {base}")
        p(f"buffer_load_dwordx4 {vr(r)}, {vL16}, {sWS}, {sA} offen sc1", tag=tag)
        p(f"buffer_load_dwordx4 {vr(r+4)}, {vL16}, {sWS}, {sA} offen offset:1024 sc1", tag=tag)
    def flag_ops(r):
        ops = [f"v_xor_b32 v{r+i}, {sT0 if i % 2 == 0 else sT1}, v{r+i}" for i in range(8)]
        ops += [f"v_or3_b32 v{r}, v{r}, v{r+1}, v{r+2}", f"v_or3_b32 v{r+3}, v{r+3}, v{r+4}, v{r+5}",
                f"v_or3_b32 v{r}, v{r}, v{r+6}, v{r+7}", f"v_or_b32 v{r}, v{r}, v{r+3}", f"v_cmp_ne_u32 vcc, 0, v{r}"]
        return ops
    def flag_check(base, r, tag):
        lab = f"L_fw{base:x}"
        p.wait_vm(tag)
        p(f"s_mov_b32 {sCNT}, 0\n{lab}:")
        for l in flag_ops(r): p(l)
        p(f"""s_cbranch_vccz {lab}_ok
        s_add_u32 {sCNT}, {sCNT}, 1
        s_cmp_ge_u32 {sCNT}, {SPIN_LIMIT}
        s_cbranch_scc1 {lab}_ok""")
        flag_issue(base, r, 'untracked')
        p(f"s_waitcnt vmcnt(0)\ns_branch {lab}\n{lab}_ok:")

    def pack_tiles(src, swap_pairs):
        r = []
        for ft in range(7):
            r.append(f"v_cvt_pk_bf16_f32 v{PK+2*ft}, v{src+4*ft}, v{src+4*ft+1}")
            r.append(f"v_cvt_pk_bf16_f32 v{PK+2*ft+1}, v{src+4*ft+2}, v{src+4*ft+3}")
        if not swap_pairs:
            for i in range(14): r.append(f"v_min_u32 v{PK+i}, -2, v{PK+i}")
        r += [f"v_mov_b32 v{PK+14}, v{PK+12}", f"v_mov_b32 v{PK+15}, v{PK+13}"]
        for pr in (range(4) if swap_pairs else [3]):
            r.append(f"v_permlane32_swap_b32 v{PK+4*pr}, v{PK+4*pr+2}")
            r.append(f"v_permlane32_swap_b32 v{PK+4*pr+1}, v{PK+4*pr+3}")
        return r

    hk = {('post', o['tag_at']): lambda: p(f"buffer_load_dwordx2 {vr(vTag,2)}, off, {sDBG}, 0 sc1", tag='tag')}
    if o.get('fine'):
        stamp('xrd')
        for n in range(7): hk[('done', n)] = (lambda n=n: stamp(f'c{n}'))
    if isinstance(o['clr_at'], list):
        for i_, n_ in enumerate(o['clr_at']):
            if n_ < 8: hk[('done', n_)] = (lambda i_=i_: h_store(i_, 232, 'clr'))
    if o['hfine'] > 1: hk[('done', 3)] = lambda: sch.update(hmax=1)
    pipeline(range(8), hk)
    sch['hmax'] = 4; sch['hold'] = o['hold'] > 1
    exch_write(Z2)
    barrier()
    exch_read(Z2, 'L_ex2')
    stamp('z2_mfma')
    get_tag()
    if o['clr_at'] == 'gelu': clears()
    g_ = gelu(Z2, 28)
    fg(g_[:4+18*4])
    p.wait_lg('L_ex2')
    fg(g_[4+18*4:])
    exch_fix(Z2, 'L_ex2')
    S2 = [vr(14, 2), vr(16, 2)]
    st = []
    if o['stat1']:
        M2_ = [vr(MEANI, 2), vr(MEANI + 2, 2)]
        for h in range(2): st.append(f"v_pk_add_f32 {M2_[h]}, {vr(Z2+2*h,2)}, {vr(Z2+4+2*h,2)}")
        for h in range(2): st.append(f"v_pk_mul_f32 {S2[h]}, {vr(Z2+2*h,2)}, {vr(Z2+2*h,2)}")
        for ft in range(1, 7):
            if ft > 1:
                for h in range(2): st.append(f"v_pk_add_f32 {M2_[h]}, {M2_[h]}, {vr(Z2+4*ft+2*h,2)}")
            for h in range(2): st.append(f"v_pk_fma_f32 {S2[h]}, {vr(Z2+4*ft+2*h,2)}, {vr(Z2+4*ft+2*h,2)}, {S2[h]}")
        st += rowred([f'v{MEANI+r}' for r in range(4)] + [f'v{14+r}' for r in range(4)], [8, 4, 2, 1])
    else:
        for h in range(2): st.append(f"v_pk_add_f32 {S2[h]}, {vr(Z2+2*h,2)}, {vr(Z2+4+2*h,2)}")
        for ft in range(2, 7):
            for h in range(2): st.append(f"v_pk_add_f32 {S2[h]}, {S2[h]}, {vr(Z2+4*ft+2*h,2)}")
        S = [f'v{14+r}' for r in range(4)]
        st += rowred(S, [8, 4, 2, 1])
        for r in range(4): st.append(f"v_mul_f32 v{MEANI+r}, {fh(1.0/112)}, {S[r]}")
        for ft in range(7):
            for h in range(2): st.append(f"v_pk_add_f32 {vr(Z2+4*ft+2*h,2)}, {vr(Z2+4*ft+2*h,2)}, {vr(MEANI+2*h,2)} neg_lo:[0,1] neg_hi:[0,1]")
        for h in range(2): st.append(f"v_pk_mul_f32 {S2[h]}, {vr(Z2+2*h,2)}, {vr(Z2+2*h,2)}")
        for ft in range(1, 7):
            for h in range(2): st.append(f"v_pk_fma_f32 {S2[h]}, {vr(Z2+4*ft+2*h,2)}, {vr(Z2+4*ft+2*h,2)}, {S2[h]}")
        st += rowred(S, [8, 4, 2, 1])
    st += lines(f"""
    v_cndmask_b32 v18, v{MEANI}, v{MEANI+1}, {sM1}
    v_cndmask_b32 v19, v{MEANI+2}, v{MEANI+3}, {sM1}
    v_cndmask_b32 v24, v18, v19, {sM2}
    v_cndmask_b32 v18, v14, v15, {sM1}
    v_cndmask_b32 v19, v16, v17, {sM1}
    v_cndmask_b32 v26, v18, v19, {sM2}
    v_mov_b32 v25, {sT0}
    v_mov_b32 v27, {sT1}
    s_lshl_b32 {sB}, {sCB}, 10
    s_add_u32 {sA}, {sF}, {sB}
    """)
    fg(st)
    p(f"s_mov_b64 exec, {sLT4}")
    p(f"buffer_store_dwordx4 v[24:27], {vSt0}, {sWS}, {sA} offen sc1", tag='st')
    p(f"""s_mov_b64 exec, -1
    v_lshrrev_b32 v18, 2, {vC}
    v_lshl_add_u32 {vSt0}, v18, 10, {vSt0}
    v_add_u32 {vSt1}, 4096, {vSt0}""")
    p(f"""s_lshl_b32 {sA}, {sRB}, 2
    s_add_u32 {sA}, {sA}, {sOM}
    s_lshl_b32 {sA}, {sA}, 1
    v_lshlrev_b32 v14, 8, {vC}""")
    p(f"buffer_load_ushort {vBsp}, v14, {sBSP}, {sA} offen", tag='bsp')
    if o['t_wo']:
        p(f"""s_lshr_b32 {sA}, s2, 3
        s_lshl_b32 {sA}, {sA}, 2
        s_add_u32 {sA}, {sA}, {sW}
        s_mul_i32 {sA}, {sA}, 7168
        s_and_b32 {sB}, s2, 1
        s_lshl_b32 {sB}, {sB}, 9
        s_add_u32 {sA}, {sA}, {sB}
        v_lshrrev_b32 v14, 2, v0
        v_lshlrev_b32 v14, 10, v14
        v_and_b32 v15, 3, v0
        v_lshl_add_u32 v14, v15, 7, v14
        s_mov_b64 exec, 0xfffffff""")
        p(f"buffer_load_dword v27, v14, {sWOUT}, {sA} offen", tag='touch')
        p("s_mov_b64 exec, -1")
    if o['clr_at'] == 'stats': clears()
    stamp('stats_pub')

    def stat_issue(tag):
        p(f"buffer_load_dwordx4 {vr(FLG)}, {vSt0}, {sWS}, {sF} offen sc1", tag=tag)
        p(f"buffer_load_dwordx4 {vr(FLG+4)}, {vSt1}, {sWS}, {sF} offen sc1", tag=tag)
    def normalize_publish():
        p.wait_vm('stl')
        F = FLG
        p(f"""s_mov_b32 {sCNT}, 0
        L_stat:
        v_xor_b32 v24, {sT0}, v{F+1}
        v_xor_b32 v25, {sT1}, v{F+3}
        v_xor_b32 v26, {sT0}, v{F+5}
        v_xor_b32 v27, {sT1}, v{F+7}
        v_or3_b32 v24, v24, v25, v26
        v_or_b32 v24, v24, v27
        v_cmp_ne_u32 vcc, 0, v24
        s_cbranch_vccz L_statok
        s_add_u32 {sCNT}, {sCNT}, 1
        s_cmp_ge_u32 {sCNT}, {SPIN_LIMIT}
        s_cbranch_scc1 L_statok""")
        stat_issue('untracked')
        p("s_waitcnt vmcnt(0)\ns_branch L_stat\nL_statok:")
        stamp('stats_in')
        if o['stat1']:
            r = [f"v_add_f32 v24, v{F}, v{F+4}", f"v_add_f32 v17, v{F+2}, v{F+6}"] + rowred(['v24', 'v17'], [4, 8])
            r += lines(f"""v_mul_f32 v24, {fh(1.0/896)}, v24
            v_mul_f32 v17, {fh(1.0/896)}, v17
            v_fma_f32 v17, -v24, v24, v17
            v_max_f32 v17, 0, v17
            v_add_f32 v17, {fh(1e-5)}, v17
            v_rsq_f32 v25, v17
            v_mul_f32 v24, -v24, v25""".replace('v_mul_f32 v24, -v24, v25', 'v_mul_f32_e64 v24, -v24, v25'))
            for i in range(4):
                r.append(f"v_mov_b32_dpp v{14+i}, v25 quad_perm:[{i},{i},{i},{i}] row_mask:0xf bank_mask:0xf")
            for i in range(4):
                r.append(f"v_mov_b32_dpp v{18+i}, v24 quad_perm:[{i},{i},{i},{i}] row_mask:0xf bank_mask:0xf")
        else:
            r = [f"v_add_f32 v24, v{F}, v{F+4}"] + rowred(['v24'], [4, 8])
            r += lines(f"""v_mul_f32 v24, {fh(0.125)}, v24
        v_sub_f32 v16, v{F}, v24
        v_sub_f32 v20, v{F+4}, v24
        v_mul_f32 v16, v16, v16
        v_fmac_f32 v16, v20, v20
        v_add_f32 v17, v{F+2}, v{F+6}
        v_fmac_f32 v17, {fh(112.0)}, v16""")
            r += rowred(['v17'], [4, 8])
            r += lines(f"""v_mov_b32 v18, {fh(1e-5)}
        v_fmac_f32 v18, {fh(1.0/896)}, v17
        v_rsq_f32 v25, v18""")
            for i in range(4):
                r.append(f"v_mov_b32_dpp v{18+i}, v24 quad_perm:[{i},{i},{i},{i}] row_mask:0xf bank_mask:0xf")
            for i in range(4):
                r.append(f"v_mov_b32_dpp v{14+i}, v25 quad_perm:[{i},{i},{i},{i}] row_mask:0xf bank_mask:0xf")
            for h in range(2): r.append(f"v_pk_add_f32 {vr(18+2*h,2)}, {vr(MEANI+2*h,2)}, {vr(18+2*h,2)} neg_lo:[0,1] neg_hi:[0,1]")
            for h in range(2): r.append(f"v_pk_mul_f32 {vr(18+2*h,2)}, {vr(18+2*h,2)}, {vr(14+2*h,2)}")
        for ft in range(7):
            for h in range(2): r.append(f"v_pk_fma_f32 {vr(Z2+4*ft+2*h,2)}, {vr(Z2+4*ft+2*h,2)}, {vr(14+2*h,2)}, {vr(18+2*h,2)}")
        r += pack_tiles(Z2, True)
        pf.extend(r)
        if not o['norm_fill']: flush_pf()
        for i_ in range(4):
            pf.append(lambda i_=i_: z2n_stores(lambda i: PK + 4 * i, 'z2n', [i_]))
            if i_ < 3: pf.extend([lambda: None] * o['zst_gap'])
        pf.append(lambda: stamp('z2n_pub'))
        if not o['zst_gap']: flush_pf()

    sch['hold'] = False
    hooks = {('post', o['poll_after']): lambda: stat_issue('stl'), ('done', o['poll_after']): normalize_publish}
    def zflag_store():
        assert p.vm.count('z2n') == 4
        p.wait_vm('z2n')
        p(f"""s_lshl_b32 {sA}, {sRB}, 3
        s_add_u32 {sA}, {sA}, {sZF}
        s_xor_b32 {sA}, {sA}, {o['zx'] << 10}
        v_mov_b32 v168, {sT0}
        v_mov_b32 v169, {sT1}
        s_mov_b64 exec, 1""")
        p(f"buffer_store_dwordx2 v[168:169], off, {sWS}, {sA} sc1", tag='flag')
        p("s_mov_b64 exec, -1")
    def zflag_issue(tag):
        p(f"buffer_load_dwordx2 {vr(FLG,2)}, v{FLG+2}, {sWS}, {sZF} offen sc1", tag=tag)
    def zflag_pre():
        p(f"v_and_b32 v{FLG+2}, 31, v0\nv_lshlrev_b32 v{FLG+2}, 3, v{FLG+2}")
        zflag_issue('fc')
    def zflag_check():
        p.wait_vm('fc')
        p(f"""s_mov_b32 {sCNT}, 0
        L_zf:
        v_xor_b32 v{FLG}, {sT0}, v{FLG}
        v_xor_b32 v{FLG+1}, {sT1}, v{FLG+1}
        v_or_b32 v{FLG}, v{FLG}, v{FLG+1}
        v_cmp_ne_u32 vcc, 0, v{FLG}
        s_cbranch_vccz L_zf_ok
        s_add_u32 {sCNT}, {sCNT}, 1
        s_cmp_ge_u32 {sCNT}, {SPIN_LIMIT}
        s_cbranch_scc1 L_zf_ok""")
        zflag_issue('untracked')
        p("s_waitcnt vmcnt(0)\ns_branch L_zf\nL_zf_ok:", tag='untracked')
        if stamps: p(f"v_writelane_b32 v30, {sCNT}, 30")
    PT = [(0, 1), (2, 3), (4, 5), (6,)]
    U = [(ps, k, tl) for ps in range(4) for k in range(16) for tl in range(len(PT[ps]))]
    NR = 21
    def zreg(n): return ZR + 4 * (n % NR)
    def z_load(n):
        ps, k, tl = U[n]
        if k == 0 and tl == 0 and ps: p(f"v_add_u32 {vZld}, 32768, {vZld}")
        p(f"buffer_load_dwordx4 {vr(zreg(n))}, {vZld}, {sWS}, {sZK[k]} offen offset:{1024*tl} {o['ldfl']}", tag=('z', n))
    def z_setup():
        assert not Q['c']
        zflag_check()
        stamp('zf_ok')
        p(f"v_add_u32 {vZld}, {sZB}, {vL16}")
        p(f"s_lshl_b32 {sZK[0]}, {sROT2}, 11")
        for k in range(1, 16): p(f"s_xor_b32 {sZK[k]}, {sZK[0]}, {k << 11}")
        for n in range(NR): Q['z'].append((('z', n), lambda n=n: z_load(n)))
    def w_setup():
        p(f"""v_lshrrev_b32 v14, 3, v0
    v_lshlrev_b32 v15, 10, v14
    v_and_b32 v14, 7, v0
    v_lshlrev_b32 v16, 1, {vQ}
    v_xor_b32 v14, v14, v16
    v_lshl_add_u32 {vWoSrc[0]}, v14, 4, v15
    v_add_u32 {vWoSrc[1]}, 7168, {vWoSrc[0]}
    v_add_u32 {vWoSrc[2]}, 7168, {vWoSrc[1]}
    v_add_u32 {vWoSrc[3]}, 7168, {vWoSrc[2]}
    s_lshr_b32 {sA}, {sW}, 1
    s_mul_i32 {sA}, {sA}, {448*1024}
    s_lshl_b32 {sB}, {o['fcb'] if o.get('fcb') is not None else sCB}, 7
    s_add_u32 {sA}, {sA}, {sB}
    s_and_b32 {sB}, {sW}, 1
    s_mul_i32 {sB}, {sB}, {112*1024}
    s_add_u32 {sWO}, {sA}, {sB}
    s_add_u32 {sWO1}, {sWO}, {sB}""")
        for pc in o['wo_order']:
            for jj in range(4):
                def f(pc=pc, jj=jj):
                    if jj == 0: p(f"s_add_u32 m0, {sW4K}, {WOB[pc]}")
                    if pc < 6:
                        if jj == 0: p(f"s_add_u32 {sG0}, {sWO}, {(224*(pc & 1) + 32*(pc >> 1))*1024}")
                    else:
                        p(f"s_add_u32 {sG0}, {sWO1}, {(112*(jj & 1) + 96 + 8*(jj >> 1) - 8*jj)*1024}")
                    dma(vWoSrc[jj], sWOUT, sG0, ('wo', pc), imm=jj*1024)
                Q['w'].append((('wo', pc), f))
    def addhook(key, f):
        g = hooks.get(key)
        hooks[key] = f if g is None else (lambda: (g(), f()))
    addhook(('done', o['poll_after'] + o['zf_delay']), zflag_store)
    addhook(('step', 17, 3), zflag_pre)
    addhook(('done', 17), z_setup)
    addhook(('done', 15), lambda: (exch_write(Z1), sch.update(hmax=6)))
    addhook(('post', 17), lambda: exch_read(Z1, 'L_ex1'))
    if o['hfine']:
        addhook(('done', 11), lambda: sch.update(hmax=5))
        addhook(('step', 17, 3), lambda: sch.update(hmax=7))
    addhook(('step', 17, 1), lambda: exch_fix(Z1, 'L_ex1'))
    addhook(('done', 15), w_setup)
    if isinstance(o['clr_at'], list):
        for i_, n_ in enumerate(o['clr_at']):
            if n_ >= 8: addhook(('done', n_), lambda i_=i_: h_store(i_, 232, 'clr'))
    addhook(('done', 15), lambda: stamp('z1_mfma'))
    if o['gelu_fill']: addhook(('done', 15), lambda: pf.extend(gelu(Z1, 28, o['gelu_fill'] == 2)))
    pipeline(range(8, 18), hooks)
    sch['hmax'] = 8
    flush_pf()
    barrier()
    stamp('a_mfma')
    def code_pf2(lab):
        rem = o['code_size'] - o['pf2_off'].get(lab, 0) - 64
        nl2 = (rem + 32 * 128 - 1) // (32 * 128)
        p(f"""{lab}:
        s_getpc_b64 s[44:45]
        s_lshr_b32 s46, s2, 3
        s_mul_i32 s46, s46, {nl2}
        v_min_u32 v167, {nl2-1}, v0
        v_add_lshl_u32 v167, v167, s46, 7
        v_min_u32 v167, {max(rem - 64, 65)}, v167""")
        p("global_load_dword v167, v167, s[44:45]", tag='cpf')
    if o['pf2']: code_pf2('Lpf2a')
    r = lines(f"""v_mul_f32 v14, {fh(-math.log2(math.e))}, v{ACA+16}
    v_exp_f32 v14, v14
    v_add_f32 v14, 1.0, v14
    v_rcp_f32 {vG}, v14""")
    for x in range(2):
        r += lines(f"""v_cvt_pk_bf16_f32 v{CFR+4*x}, v{ACA+4*x}, v{ACA+4*x+1}
        v_cvt_pk_bf16_f32 v{CFR+4*x+1}, v{ACA+4*x+2}, v{ACA+4*x+3}
        v_cvt_pk_bf16_f32 v{CFR+4*x+2}, v{ACA+8+4*x}, v{ACA+8+4*x+1}
        v_cvt_pk_bf16_f32 v{CFR+4*x+3}, v{ACA+8+4*x+2}, v{ACA+8+4*x+3}""")
    for x in range(2):
        for var in range(2):
            r.append(f"v_mfma_f32_16x16x32_bf16 {vr(G2O+8*x+4*var)}, {vr(COEF+4*var)}, {vr(CFR+4*x)}, 0")
    r += lines(f"""v_lshlrev_b32 v24, 10, {vQ}
    v_lshl_add_u32 v24, {vC}, 4, v24
    s_lshl_b32 {sA}, {sOM}, 2
    s_add_u32 {sA}, {sA}, {VASM}
    v_add_u32 v24, {sA}, v24""")
    fg(r)
    p(f"""s_cmp_lg_u32 {sCB}, 0
    s_cbranch_scc1 L_nofix
    v_mfma_f32_16x16x32_bf16 {vr(G2O+16)}, {vr(COEF+8)}, {vr(CFR)}, 0
    v_mfma_f32_16x16x32_bf16 {vr(G2O+20)}, {vr(COEF+12)}, {vr(CFR)}, 0
    s_lshl_b32 {sA}, {sRB}, 2
    s_add_u32 {sA}, {sA}, {sOM}
    s_lshl_b32 {sA}, {sA}, 6
    s_add_u32 {sA}, {sA}, {WS_G}
    v_lshlrev_b32 v14, 2, {vC}
    s_mov_b64 exec, 0xffff""", tag='untracked')
    p(f"buffer_store_dword {vG}, v14, {sWS}, {sA} offen sc1", tag='untracked')
    p(f"s_mov_b64 exec, {sC0}", tag='untracked')
    for k in range(4):
        re1, im1, re2, im2 = f"v{G2O+k}", f"v{G2O+4+k}", f"v{G2O+16+k}", f"v{G2O+20+k}"
        p(f"""v_add_f32 v14, {re1}, {re2}
        v_add_f32 v15, {im1}, {im2}
        v_sub_f32 v16, {im1}, {im2}
        v_sub_f32 v17, {re2}, {re1}
        v_mul_f32 {re1}, 0.5, v14
        v_mul_f32 {im1}, 0.5, v15
        v_mul_f32 v16, 0.5, v16
        v_mul_f32 v17, 0.5, v17
        v_cvt_pk_bf16_f32 v16, v16, v17
        ds_write_b32 v24, v16 offset:{8192 + k*256}""", tag='untracked')
    p("s_mov_b64 exec, -1\nL_nofix:\ns_nop 7")
    freed.add('fb')
    r = []
    k = 0
    for x in range(2):
        for i in range(4):
            t = f"v{16 + (k % 8)}"; k += 1
            r.append(f"v_cvt_pk_bf16_f32 {t}, v{G2O+8*x+i}, v{G2O+8*x+4+i}")
            r.append(f"ds_write_b32 v24, {t} offset:{x*4096 + i*256}")
    fg(r)
    p("s_waitcnt lgkmcnt(0)")
    barrier()
    p(f"""s_add_u32 {sA}, {sW1K}, {VASM}
    v_add_u32 v14, {sA}, {vL16}""")
    for it in range(3):
        p(f"ds_read_b128 {vr(G2O+4*it)}, v14 offset:{it*4096}")
    p(f"""s_lshl_b32 {sB}, {sRB}, 8
    s_add_u32 {sB}, {sB}, {WS_V}
    s_lshl_b32 {sA}, {sCB}, 14
    s_add_u32 {sA}, {sA}, {sB}
    s_add_u32 {sC}, {sA}, 8192
    s_add_u32 {sB}, {sB}, {16*8192}
    s_cmp_eq_u32 {sCB}, 0
    s_cselect_b32 {sB}, {sB}, {WS_SIZE}""")
    def v_stores():
        p("s_waitcnt lgkmcnt(0)")
        p(f"buffer_store_dwordx4 {vr(G2O)}, {vVad[0]}, {sWS}, {sA} offen {o['zfl']}", tag='vst')
        p(f"buffer_store_dwordx4 {vr(G2O+4)}, {vVad[0]}, {sWS}, {sC} offen {o['zfl']}", tag='vst')
        p(f"s_mov_b64 exec, {sC0}")
        p(f"buffer_store_dwordx4 {vr(G2O+8)}, {vVad[0]}, {sWS}, {sB} offen {o['zfl']}", tag='vst')
        p("s_mov_b64 exec, -1")
    if not o['v_late']: v_stores()
    if o['clr_at'] == 'v': clears()
    stamp('v_pub')
    r = ([] if o['gelu_fill'] else gelu(Z1, 28)) + [f"v_sub_f32 v24, 1.0, {vG}", "v_mov_b32 v25, v24"]
    for i in range(14): r.append(f"v_pk_mul_f32 {vr(Z1+2*i,2)}, {vr(Z1+2*i,2)}, v[24:25]")
    gel1 = r

    gel1 += lines(f"""v_lshlrev_b32 v{BS4}, 16, {vBsp}
    v_mov_b32 v{BS4+1}, v{BS4}
    v_mov_b32 v{BS4+2}, v{BS4}
    v_mov_b32 v{BS4+3}, v{BS4}""")
    fg(gel1)
    drain_h(8)
    while sch['cur']: issue(sch['cur'])
    while Q['z']: issue('z')
    if o['v_late']: v_stores()
    pend.add('xh')
    stamp('wsp_in')

    def acc(ps, u, tl): return ACC + (ps & 1) * 32 + (u * 2 + tl) * 4
    vRw = ['v10', 'v28', 'v29']; vRr = 'v2'; vVld = 'v5'; vGa = 'v25'
    fill = []
    for u in range(1, 4):
        fill += lines(f"""s_xor_b32 {sB}, {sW}, {u}
        s_mul_i32 {sB}, {sB}, 6144
        v_add_u32 {vRw[u-1]}, {sB}, {vL16}""")
    fill += lines(f"""s_mul_i32 {sB}, {sW}, 6144
    v_add_u32 {vRr}, {sB}, {vL16}
    s_lshl_b32 {sB}, {sW}, 5
    s_add_u32 {sTAU[0]}, {sB}, {sRB}
    s_xor_b32 {sTAU[1]}, {sTAU[0]}, 32""")
    fill.append(lambda: (barrier()))
    fill.append(lambda: p(f"""s_sub_u32 {sB}, 0, {sRB}
    s_lshl_b32 {sC}, {sCB}, 2
    s_sub_u32 {sE}, 31, {sC}
    s_cmp_lt_u32 {sCB}, 4
    s_cselect_b32 {sB}, {sRB}, {sB}
    s_cselect_b32 {sC}, {sC}, {sE}
    s_cselect_b32 {sVS}, 1, -1
    s_cselect_b64 vcc, -1, 0"""))
    fill += lines(f"""s_lshl_b32 {sVS}, {sVS}, 13
    s_and_b32 {sB}, {sB}, 15
    s_mul_i32 {sE}, {sB}, {VT1}
    s_lshl_b32 {sC}, {sC}, 13
    s_add_u32 {sE}, {sE}, {sC}
    s_and_b32 {sB}, {sW}, 1
    s_lshl_b32 {sB}, {sB}, 12
    s_add_u32 {sE}, {sE}, {sB}
    s_add_u32 {sE}, {sE}, {WS_V}
    v_sub_u32 v14, 16, {vC}
    v_lshrrev_b32 v15, 4, v14
    v_and_b32 v14, 15, v14
    v_lshl_add_u32 v14, v15, 9, v14
    v_cndmask_b32 v14, v14, {vC}, vcc
    v_lshlrev_b32 v14, 4, v14
    v_lshl_add_u32 {vVld}, {vQ}, 8, v14
    s_lshr_b32 {sD}, {sB}, 1
    s_add_u32 {sB}, {sB}, {WS_H}
    s_mul_i32 {sHO[0]}, {sTAU[0]}, {28*1024}
    s_add_u32 {sD}, {sD}, {sHO[0]}
    s_add_u32 {sD}, {sD}, {WS_H + 24*1024}
    s_add_u32 {sHO[0]}, {sHO[0]}, {sB}
    s_mul_i32 {sHO[1]}, {sTAU[1]}, {28*1024}
    s_add_u32 {sHO[1]}, {sHO[1]}, {sB}
    v_lshrrev_b32 v14, 2, {vC}
    v_and_b32 v15, 1, {vQ}
    v_lshrrev_b32 v16, 3, {vC}
    v_lshl_add_u32 v16, v15, 1, v16
    v_and_b32 v17, 3, {vC}
    v_lshlrev_b32 v17, 3, v17
    s_and_b32 {sB}, {sW}, 1
    s_lshl_b32 {sB}, {sB}, 13
    v_add_u32 v17, {sB}, v17
    v_lshl_add_u32 v14, {vQ}, 2, v14
    v_lshl_add_u32 v14, v14, 7, v17
    v_lshlrev_b32 {vGa}, 2, {vC}""")
    vWoRd2 = ['v7', 'v11', 'v12', 'v24']
    for dt in range(4):
        fill += lines(f"""v_xor_b32 v15, {dt}, v16
        v_lshl_add_u32 {vWoRd2[dt]}, v15, 5, v14""")
    if o['f_where'] != 2: ffill = []
    else:
        ffill = [l.replace(sA, 's44').replace(sB, 's45').replace(sC, 's46') for l in ffill]
        hd = ffill[:5]
        ffill = [lambda: p('\n'.join(hd))] + ffill[5:]
    def reduction(ps, inline):
        nt = len(PT[ps]); rb_ = RED
        r = []
        for u in range(1, 4):
            for tl in range(nt):
                r.append(f"ds_write_b128 {vRw[u-1]}, {vr(acc(ps,u,tl))} offset:{rb_ + ((u-1)*2+tl)*1024}")
                if not inline: r += ['', '']
        def sync():
            w = [t for t in p.vm if isinstance(t, tuple) and t[0] == 'wo']
            need = ['vst', 'clr'] + (w[:-o['wo_lag']] if (o['wo_lag'] and ps < 3 and Q['w']) else w)
            if ps >= 2 or ps == 0: p.wait_vm(need if ps >= 2 else ['vst', 'clr'], 'lgkmcnt(0)')
            else: p("s_waitcnt lgkmcnt(0)")
            barrier()
            if ps >= 2:
                for pc in range(7):
                    if need.count(('wo', pc)) == 4: wo_vis.add(pc)
            if ps == 0: flag_store(WS_FV)
        if not inline: r += [''] * 3
        r.append(sync)
        for u in range(1, 4):
            for tl in range(nt):
                r.append((f"ds_read_b128 {vr(acc(ps,u,tl))}, {vRr} offset:{rb_ + ((u-1)*2+tl)*1024}", ('rd', ps, u)))
        if not inline: r += [''] * 4 + [lambda: (p.wait_lg(('rd', ps, 3)), barrier())]
        a0 = acc(ps, 0, 0)
        for u in range(1, 4):
            r.append(lambda u=u: p.wait_lg(('rd', ps, u)))
            if inline:
                for i in range(2 * nt): r.append(f"v_pk_add_f32 {vr(a0+2*i,2)}, {vr(a0+2*i,2)}, {vr(acc(ps,u,0)+2*i,2)}")
            else:
                for i in range(4 * nt): r.append(f"v_add_f32 v{a0+i}, v{a0+i}, v{acc(ps,u,0)+i}")
        for i in range(4 * nt): r.append(f"v_mul_f32 v{a0+i}, v{a0+i}, v{Z1+8*ps+i}")
        for i in range(2 * nt): r.append(f"v_cvt_pk_bf16_f32 v{PKH+i}, v{a0+2*i}, v{a0+2*i+1}")
        for i in range(2 * nt): r.append(f"v_min_u32 v{PKH+i}, -2, v{PKH+i}")
        if nt == 1:
            r += [f"v_mov_b32 v{PKH+2}, v{PKH}", f"v_mov_b32 v{PKH+3}, v{PKH+1}",
                  f"v_permlane32_swap_b32 v{PKH}, v{PKH+2}", f"v_permlane32_swap_b32 v{PKH+1}, v{PKH+3}"]
        r.append(lambda: (h_store(ps, PKH, 'hst'), red_done.add(ps)))
        if inline: r.append(barrier)
        return r
    wo_vis = set(); red_done = set(); npost = [0]
    last_setup = fill[-1]
    if o['clr_at'] == 'p2':
        fill = [f"v_mov_b32 v{PKH+i}, -1" for i in range(4)] + fill
        for i_ in range(4): fill.insert(6 + o['clr_gap'] * i_, lambda i_=i_: h_store(i_, PKH, 'clr'))
    def setup_done(): return last_setup not in fill
    def emit(x):
        if callable(x): x()
        elif isinstance(x, tuple): p(x[0], tag=x[1])
        elif x: p(x)
    ringfree = [zreg(n) for n in range(112 - NR, 112)]
    Vreg = {}
    for dt in range(4):
        for kl in range(4):
            Vreg[(kl, dt)] = ar(64 * dt + 4 * (kl - 2)) if kl >= 2 else vr(ringfree[2 * dt + kl])
    pool = ringfree[8:] + [ACC + 4 * i for i in range(8)] + [Z1 + 4 * i for i in range(7)]
    Hreg = {g: pool[8 * g: 8 * g + 8] for g in range(4)}
    def h_load(g, i, tag):
        sr = sA if tag == 'untracked' else sG1
        if g < 3:
            if i % 4 == 0: p(f"s_add_u32 {sr}, {sHO[1 - i // 4]}, {8192*g}")
            p(f"buffer_load_dwordx4 {vr(Hreg[g][i])}, {vL16}, {sWS}, {sr} offen offset:{1024*(i%4)} sc1", tag=tag)
        else:
            if i % 2 == 0: p(f"s_xor_b32 {sr}, {sD}, {1024*i}")
            p(f"buffer_load_dwordx4 {vr(Hreg[g][i])}, {vL16}, {sWS}, {sr} offen offset:{1024*(i%2)} sc1", tag=tag)
    post = []
    def v_load(kl, dt):
        p(f"s_mul_i32 {sG2}, {sVS}, {dt}\ns_add_u32 {sG2}, {sG2}, {sE}")
        p(f"buffer_load_dwordx4 {Vreg[(kl,dt)]}, {vVld}, {sWS}, {sG2} offen offset:{kl*1024} sc1", tag='vt')
        p(f"buffer_load_dwordx4 {Vreg[(kl+1,dt)]}, {vVld}, {sWS}, {sG2} offen offset:{kl*1024+1024} sc1", tag='vt')
    for dt in range(4): post.append((112 - NR + 2 * dt + 1, None, lambda dt=dt: v_load(0, dt)))
    for dt in range(4): post.append((o['v2_at'] + o['v2_gap'] * dt, None, lambda dt=dt: v_load(2, dt)))
    def g_load():
        for u in range(2):
            p(f"s_lshl_b32 {sG2}, {sTAU[u]}, 6\ns_add_u32 {sG2}, {sG2}, {WS_G}")
            p(f"buffer_load_dword v{BS4+2*u}, {vGa}, {sWS}, {sG2} offen sc1", tag='g')
    post.append((98, None, g_load))
    for g in range(2):
        for i in range(8):
            idx = 8 * g + i
            post.append((112 - NR + 8 + idx if idx < 13 else 0, None if idx < 13 else 2, lambda g=g, i=i: h_load(g, i, ('h', g))))
    def wreg(s_, dt): return 64 * dt + (8 + 4 * s_ if s_ < 14 else 4 * (s_ - 14))
    wadj = [0]
    def wo_read(s_, dt, h):
        sl = s_ if s_ < 14 else s_ - 2
        off = WOB[sl >> 1] + (sl & 1) * 4096 + h * 2048
        want = [RING + 3 * SL, RING + 3 * SL, RING, RING, RING, 0, 0][sl >> 1]
        if want != wadj[0]:
            d = want - wadj[0]
            for r_ in vWoRd2: p(f"v_add_u32 {r_}, {d}, {r_}" if d > 0 else f"v_subrev_u32 {r_}, {-d}, {r_}")
            wadj[0] = want
        if s_ == 14 and dt == 0 and h == 0:
            for r_ in vWoRd2: p(f"v_xor_b32 {r_}, 8192, {r_}")
        p(f"ds_read_b64_tr_b16 {ar(wreg(s_,dt)+2*h,2)}, {vWoRd2[dt]} offset:{off - want}", tag=('wf', s_))
    wrd = [(s_, dt, h) for s_ in range(16) for dt in range(4) for h in range(2)]

    if o['f_pre']:
        for x in fill + ffill: emit(x)
        fill = []; ffill = []
    for n, (ps, k, tl) in enumerate(U):
        if k == 0 and tl == 0 and ps:
            fill = reduction(ps - 1, False) + fill
            if o.get('fine2'): stamp(f'pass{ps-1}')
        if n == o['fv_at']: flag_issue(WS_FV, 16, 'fv')
        if n == 112 - NR - 1: flag_check(WS_FV, 16, 'fv')
        if n % 2 == 0: p.wait_vm([('z', min(n + 1, 111))])
        if n == 0: stamp('z_first')
        for j, u in enumerate((1, 2, 3, 0)):
            a_ = acc(ps, u, tl)
            c_ = vr(a_) if k else (vr(BS4) if u == 0 else '0')
            p(f"v_mfma_f32_16x16x32_bf16 {vr(a_)}, {vr(zreg(n))}, {ar(64*u+4*k)}, {c_}")
            if j < 3:
                x = fill.pop(0) if fill else ''
                if x == '' and ffill and setup_done(): x = ffill.pop(0)
                emit(x)
                if isinstance(x, str) and x.startswith('s_') and fill: emit(fill.pop(0))
                if ps == 3 and fill: emit(fill.pop(0))
                if ps == 3 and not fill:
                    for _ in range(2):
                        if wrd[0][0] + 2 < k and (wrd[0][0] >> 1) in wo_vis: wo_read(*wrd.pop(0))
            if j == 1 and len(Q['w']) > 4 * o['wo_defer'] and legal(Q['w'][0][0]) and n % o['wo_every'] == 0: issue('w')
        if n + NR < 112: z_load(n + NR)
        else:
            while len(Q['w']) > 4 * o['wo_defer']: issue('w')
            if post and npost[0] < o['post_n'] and post[0][0] <= n and (post[0][1] is None or post[0][1] in red_done): post.pop(0)[2](); npost[0] += 1
    if o.get('verbose'): print('leftover', len(fill), len(ffill), 'wrd', len(wrd))
    for x in fill + ffill: emit(x)
    stamp('p2_mfma')
    r3 = reduction(3, True)
    for i, x in enumerate(r3):
        if i == len(r3) - 2:
            while len(post) > o['pre_keep'] and o['pre_store']: post.pop(0)[2]()
        emit(x)
        if len(post) > o['pre_keep'] and o['pre_store'] and i % 2 == 1: post.pop(0)[2]()
    stamp('h_pub')
    A3 = ACC + 32
    bg3 = [x[2] for x in post] + [lambda: issue('w')] * len(Q['w'])
    tpub = [0]
    def fg3(ins, nread=2):
        for i, l in enumerate(ins):
            emit(l)
            for _ in range(nread):
                if wrd and (wrd[0][0] < 14 or ydone) and min(wrd[0][0] >> 1, 6) in wo_vis: wo_read(*wrd.pop(0))
            tpub[0] += 1
            if tpub[0] == o['h2_at']: bg3.extend([lambda i=i_: h_load(2, i, ('h', 2)) for i_ in range(8)])
            if tpub[0] == o['h3_at']: bg3.extend([lambda i=i_: h_load(3, i, ('h', 3)) for i_ in range(4)])
            if bg3 and i % o['bg3e'] == o['bg3e'] - 1: bg3.pop(0)()
    def need_h(g):
        if not any(t == ('h', g) for t in p.vm) and g >= 2 and tpub[0] < o[f'h{g}_at']:
            bg3.extend([lambda i=i_: h_load(g, i, ('h', g)) for i_ in range(len(Hreg[g]))]); o[f'h{g}_at'] = -1
        while sum(t == ('h', g) for t in p.vm) < len(Hreg[g]): bg3.pop(0)()
        p.wait_vm([('h', g)])
    def check_ops(g):
        rs = [r_ + i for r_ in Hreg[g] for i in range(4) if i % (4 // o['chk']) == 0]
        ops = [f"v_max3_u32 v23, v{rs[0]}, v{rs[1]}, v{rs[2]}"]
        rs = rs[3:]
        while len(rs) >= 2:
            ops.append(f"v_max3_u32 v23, v23, v{rs[0]}, v{rs[1]}"); rs = rs[2:]
        if rs: ops.append(f"v_max_u32 v23, v23, v{rs[0]}")
        ops.append(f"v_cmp_eq_u32 vcc, -1, v23")
        return ops
    def check_branch(g):
        p(f"""s_cbranch_vccz L_ok{g}
        s_call_b64 {sRET}, L_retry{g}
        L_ok{g}:""")
    ydone = []
    while sum(t == 'vt' for t in p.vm) < 16 or 'g' not in p.vm: bg3.pop(0)()
    p(f"""s_xor_b32 {sA}, {sW}, 1
    s_lshl_b32 {sA}, {sA}, 12
    v_add_u32 v14, {sA}, {vL16}
    v_add_u32 v16, {sW4K}, {vL16}
    s_lshl_b32 {sF}, {sTAU[0]}, 10
    s_lshl_b32 {sB}, {sCB}, 7
    s_add_u32 {sF}, {sF}, {sB}
    s_mov_b32 {sCNT}, 0""")
    p.wait_vm(['vt', 'g'])
    ym = []
    for kl in range(4):
        for u in range(2):
            for dt in range(4):
                a_ = A3 + 16 * u + 4 * dt
                ym.append(f"v_mfma_f32_16x16x32_bf16 {vr(a_)}, {Vreg[(kl,dt)]}, {vr(FF+16*u+4*kl)}, {vr(a_) if kl else '0'}")
    fg3(ym, o['ynr'])
    ydone.append(1)
    need_h(0)
    sc = check_ops(0) + [f"v_pk_mul_f32 {vr(A3+16*u+2*i,2)}, {vr(A3+16*u+2*i,2)}, {vr(BS4+2*u,2)} op_sel_hi:[1,0]" for u in range(2) for i in range(8)]
    fg3(sc, o['snr'])
    check_branch(0)
    stamp('y_done')
    for g in range(4):
        ms = []
        if g < 3:
            for i in range(8):
                u = 1 - i // 4; s_ = 4 * g + i % 4
                for dt in range(4):
                    a_ = A3 + 16 * u + 4 * dt
                    ms.append((s_, f"v_mfma_f32_16x16x32_bf16 {vr(a_)}, {ar(wreg(s_,dt))}, {vr(Hreg[g][i])}, {vr(a_)}"))
        else:
            for i in range(4):
                for dt in range(4):
                    a_ = A3 + 4 * dt
                    ms.append((12 + i, f"v_mfma_f32_16x16x32_bf16 {vr(a_)}, {ar(wreg(12+i,dt))}, {vr(Hreg[g][i])}, {vr(a_)}"))
        chk = check_ops(g + 1) if g < 3 else []
        seq = []
        oset = lines(f"""s_mul_i32 {sB}, {sW}, 2304
        s_add_u32 {sB}, {sB}, {RED + 16384}
        v_mul_u32_u24 v26, 144, {vC}
        v_lshl_add_u32 v26, {vQ}, 3, v26
        v_add_u32 v26, {sB}, v26
        v_lshrrev_b32 v15, 3, v0
        v_and_b32 v17, 7, v0
        v_mul_u32_u24 v27, 144, v15
        v_lshl_add_u32 v27, v17, 4, v27
        v_add_u32 v27, {sB}, v27
        v_lshlrev_b32 v15, 17, v15
        v_lshl_add_u32 v15, v17, 4, v15""") if g == 2 else []
        for i, (s_, m) in enumerate(ms):
            def mm(s_=s_, m=m):
                while wrd and wrd[0][0] <= s_:
                    assert min(wrd[0][0] >> 1, 6) in wo_vis
                    wo_read(*wrd.pop(0))
                p.wait_lg(('wf', s_))
                p(m)
            seq.append(mm)
            if oset: seq.append(oset.pop(0))
            if chk and i == len(ms) - len(chk) - 1: seq.append(lambda g=g: need_h(g + 1))
            if chk and i >= len(ms) - len(chk) and len(chk) >= len(ms) - i: seq.append(chk.pop(0))
            if g == 2 and 18 <= i < 22: seq.append(f"ds_write_b128 v14, {vr(A3+16+4*(i-18))} offset:{RED + (i-18)*1024}")
            if g == 3 and i == 3:
                def xch():
                    while wrd: wo_read(*wrd.pop(0))
                    p("s_waitcnt lgkmcnt(0)\ns_barrier")
                    for dt in range(4): p(f"ds_read_b128 {vr(A3+16+4*dt)}, v16 offset:{RED + dt*1024}", tag='xch')
                seq.append(xch)
        seq += chk
        fg3(seq, 1)
        if g < 3: check_branch(g + 1)
        if g == o['wo_bar'] and len(wo_vis) < 7:
            while Q['w']: bg3.pop(0)()
            p.wait_vm([('wo', 6)]); barrier(); wo_vis.update(range(7))
        if g == 2: stamp('g2_done')
    p.wait_lg('xch')
    for dt in range(4):
        for h in range(2): p(f"v_pk_add_f32 {vr(A3+4*dt+2*h,2)}, {vr(A3+4*dt+2*h,2)}, {vr(A3+16+4*dt+2*h,2)}")
        p(f"v_cvt_pk_bf16_f32 v{18+2*dt}, v{A3+4*dt}, v{A3+4*dt+1}")
        p(f"v_cvt_pk_bf16_f32 v{19+2*dt}, v{A3+4*dt+2}, v{A3+4*dt+3}")
        p(f"ds_write_b64 v26, {vr(18+2*dt,2)} offset:{32*dt}")
    p("s_waitcnt lgkmcnt(0)")
    p(f"ds_read_b128 {vr(A3)}, v27\nds_read_b128 {vr(A3+4)}, v27 offset:{8*144}")
    p(f"s_add_u32 {sA}, {sF}, {8 << 17}\ns_waitcnt lgkmcnt(1)")
    p(f"buffer_store_dwordx4 {vr(A3)}, v15, {sOUT}, {sF} offen {o['outfl']}")
    p("s_waitcnt lgkmcnt(0)")
    p(f"buffer_store_dwordx4 {vr(A3+4)}, v15, {sOUT}, {sA} offen {o['outfl']}")
    if stamps:
        stamp('end')
        p(f"""v_writelane_b32 v30, {sCNT}, 31
        s_lshl_b32 {sA}, s2, 2
        s_add_u32 {sA}, {sA}, {sW}
        s_lshl_b32 {sA}, {sA}, 8
        s_add_u32 {sA}, {sA}, {WS_STAMP}
        v_lshlrev_b32 v14, 3, v0
        s_mov_b64 exec, {sLO32}""")
        p(f"buffer_store_dwordx2 v[30:31], v14, {sWS}, {sA} offen")
    if o.get('enc'):
        if o['enc'] == 'end': p("s_memrealtime s[98:99]\ns_waitcnt lgkmcnt(0)")
        if o['enc'] == 'drain': p("s_waitcnt vmcnt(0)\ns_memrealtime s[98:99]\ns_waitcnt lgkmcnt(0)")
        if o['enc'] == 'none': p(f"s_mov_b32 s98, {sT0}")
        p("""L_padspin:
        s_memrealtime s[100:101]
        s_waitcnt lgkmcnt(0)
        s_sub_u32 s100, s100, s98
        s_cmp_lt_i32 s100, 5000
        s_cbranch_scc1 L_padspin""")
    p("L_end:\ns_endpgm")
    for b in range(4):
        p(f"L_retry{b}:")
        for i in range(len(Hreg[b])): h_load(b, i, 'untracked')
        p("s_waitcnt vmcnt(0)")
        for l in check_ops(b): p(l)
        p(f"""s_add_u32 {sCNT}, {sCNT}, 1
        s_cmp_ge_u32 {sCNT}, {SPIN_LIMIT}
        s_cbranch_scc1 L_retry{b}_r
        s_cbranch_vccnz L_retry{b}
        L_retry{b}_r:
        s_setpc_b64 {sRET}""")
    p.raw(f""".section .rodata,"a"
.p2align 6
.amdhsa_kernel {NAME}
  .amdhsa_next_free_vgpr 512
  .amdhsa_next_free_sgpr 102
  .amdhsa_accum_offset 256
  .amdhsa_group_segment_fixed_size 0
  .amdhsa_kernarg_size 112
  .amdhsa_user_sgpr_count 2
  .amdhsa_user_sgpr_kernarg_segment_ptr 1
  .amdhsa_system_sgpr_workgroup_id_x 1
.end_amdhsa_kernel""")
    assert not bgq
    return p.text()

def code_size(txt):
    import subprocess, re
    open('_sz.s', 'w').write(txt)
    subprocess.run(['clang', '-x', 'assembler', '-target', 'amdgcn-amd-amdhsa', '-mcpu=gfx950', '-c', '_sz.s', '-o', '_sz.o'], check=True)
    out = subprocess.run(['llvm-objdump', '-h', '_sz.o'], capture_output=True, text=True).stdout
    return int(re.search(r'\.text\s+([0-9a-f]+)', out).group(1), 16)

def write(fn, stamps=False, opt=None):
    opt = dict(opt or {})
    opt['code_size'] = code_size(gen(stamps, opt)) & ~3
    import subprocess, re
    sym = subprocess.run(['llvm-objdump', '-t', '_sz.o'], capture_output=True, text=True).stdout
    opt['pf2_off'] = {m.group(2): int(m.group(1), 16) for m in re.finditer(r'^([0-9a-f]+) .* (Lpf2\w+)$', sym, re.M)}
    txt = gen(stamps, opt)
    assert code_size(txt) >= opt['code_size']
    open(fn, 'w').write(txt)
    if stamps: open(fn + '.names', 'w').write('\n'.join(STAMPN))

if __name__ == '__main__':
    stamps = '--stamps' in sys.argv
    out = [a for a in sys.argv[1:] if not a.startswith('--')]
    write(out[0], stamps)
```

```python
import sys, math, struct
from prog import Prog

NAME = 'gated_mix__spectral_fnet__mixer_gmlp__prompt_kernel'

HEADER = """; gated_mix(spectral FNet, mixer gMLP): one persistent launch, 256 workgroups (one per CU), 4 waves each.
; Workgroup (rb, cb): rows {128a + 4rb + i}, 112 hidden columns.
;   P1  z2 = gelu(x w_in) -> row statistics exchanged through d_ws (tagged granules) -> normalised z2 published;
;       z1 kept in registers; hidden-dim DFT + 16-point sequence DFT stage published as V; w_sp tile staged into AGPRs.
;   P2  g = w_sp z2n + b (K split over the waves, 4 column passes, LDS reduction), h = z1 (1-gate) g published.
; Hand-offs use write-through (sc1) stores and sc1 loads guarded by a per-launch tag (d_debug) or a sentinel; every spin is bounded."""

def f2u(x): return struct.unpack('<I', struct.pack('<f', x))[0]
def fh(x): return f"0x{f2u(x):08x}"

WS_Z2N = 0
WS_H = 0x400000
WS_V = 0x800000
VT1 = 17 * 8192
WS_ST = 0xC00000
WS_G = 0xC80000
WS_FC = 0xC90000
WS_FV = 0xCA0000
WS_STAMP = 0xD00000
WS_SIZE = 0x1000000
SL = 16 * 1040 + 16
NSL = 5
RING = 4 * SL
HB = 4 * 1040
GATE = 9 * SL
RED = 32768
VASM = 163840 - 12288
WO0 = 106496
WO1 = 0
RED3 = 90112
LDS_TOTAL = 163840
SPIN_LIMIT = 200000

sX, sHRE, sHIM, sWIN, sWSP, sWOUT, sOUT, sWS, sDBG, sBSP, sGATE = [f"s[{8+4*i}:{11+4*i}]" for i in range(11)]
SRD = dict(X=8, HRE=12, HIM=16, WIN=20, WSP=24, WOUT=28, OUT=32, WS=36, DBG=40, BSP=44, GATE=48)
KOFF = dict(X=0, WIN=48, HRE=24, HIM=32, WS=104, DBG=96, WSP=56, WOUT=72, OUT=88, BSP=64, GATE=80)
sRB, sCB, sW, sOM, sT0, sT1, sROT2, sW1K = 's52', 's53', 's54', 's55', 's56', 's57', 's58', 's59'
sM1, sM2, sLT4, sLO32, sC0 = 's[60:61]', 's[62:63]', 's[64:65]', 's[66:67]', 's[68:69]'
sRET = 's[70:71]'
sOFF = ['s72', 's73', 's74', 's75']
sA, sB, sC, sD, sE, sF = 's76', 's77', 's78', 's79', 's80', 's81'
sCNT, sZB, sZST, sHST, sHS1 = 's82', 's83', 's84', 's85', 's86'
sG0, sG1, sG2 = 's87', 's88', 's89'
sKC = [f's{90+i}' for i in range(8)]
sROT = 's3'
sWSB = 's72'
sWSM = ['s73', 's74']
sZF = 's75'
sWD = 's70'

vL16, vL16b, vC, vQ, vBsp, vG = 'v1', 'v2', 'v3', 'v4', 'v5', 'v6'
vG1, vWspRd, vZst = 'v9', 'v11', 'v12'
vWspRd2 = 'v163'
vVad = ['v7']
vWinSrc = ['v8', 'v9', 'v13', 'v6']
vWspSrc = ['v10', 'v28', 'v29', 'v2']
vWoSrc = ['v9', 'v13', 'v26', 'v27']
vWoRd = ['v7', 'v10', 'v11', 'v12']
sTAU = ['s90', 's91']
sHO = ['s92', 's93']
sVS, sSG = 's94', 's95'
sWO, sWO1 = 's96', 's97'
sZK = [f's{8+i}' for i in range(16)]
vZld = 'v8'
ZR = 172; FF = 124; BS4 = 156; PKH = 160
WOB = [RING + i * SL for i in (3, 4, 0, 1, 2)] + [0, 16384]
WO_DEP = [['c13'], ['c14'], ['c15'], ['c16'], ['c17'], ['xh'], ['xh']]
sW4K = 's6'
sWDO = 's7'
vChk = 'v13'
Z1 = 32
ACC = 60
BUF = [172, 200, 228, 144]
Z2 = 60; ACA = 88; PK = 108; COEF = 240; FLG = 164
G2O = 60; CFR = 108
FB = [172, 188, 204]
FBA = [172, 60, 192]
vWinRd = [f'v{220+i}' for i in range(4)]
vWinRd2 = [f'v{232+i}' for i in range(4)]
vGateRd = 'v224'
vWdRd = 'v225'
vWdRdS = 'v236'
vWdA = 238
vRow = [f'v{226+i}' for i in range(4)]
vExW, vExR = 'v230', 'v231'
MEANI = 156
vSt0, vSt1 = 'v160', 'v161'
vTag = 162
vXrd1, vXrd2, vXrd1p, vXrd2p = 'v20', 'v21', 'v18', 'v19'
FPARK = 0
FA = [128, 192]
XF1, XF1P, XF2P, XF2 = 0, 64, 128, 192

def vr(b, n=4): return f"v[{b}:{b+n-1}]"
def ar(b, n=4): return f"a[{b}:{b+n-1}]"
def lines(s): return [l.strip() for l in s.strip('\n').split('\n') if l.strip() and not l.strip().startswith(';')]

def gen(stamps=False, opt=None):
    o = dict(xfl='', wfl='', sfl='', poll_after=13, t_win=90, t_h=80, lat=700, bmax=300, hold_c=5, zf_delay=2, leader=False, v_late=True, wo_order=[0, 1, 2, 3, 4, 5, 6], wo_every=5, h2_at=30, h3_at=90, wo_lag=0, raw=False, xs=[], clrfl='sc1', hfl='sc1', zfl='sc1', ldfl='sc1', v2_at=100, v2_gap=2, pre_keep=0, pf2=False, clr_dw=0, pf2_off={}, hrate=1, hwait=False, hfine=1, stat1=False, pf0w=0, pf0w_late=False, pf0=2, out_mode=2, tlb_list=(sWS, sWSP, sBSP), pre_store=False, wo_defer=0, wo_bar=0, pfs_at='c1', pfw_at='c7', pffl='', pf_full=False, pf_cost=1500, tlbw=1, tlb_sh=21, tlb_w0=True, zx=1, x_first=4, c0_early=False, bmax_z2=300, clr_at='p2', clr_gap=12, zst_gap=0, pre_c=1, xrate=6, f_where=2, ynr=2, snr=1, bg3e=3, norm_fill=False, gelu_fill=0, rot2m=15, rots=0, rotm=7, xm=3, hm=1, pf_rate=[2, 1.7], zf_at=19, post_n=13, rot2=1, f_pre=False, fgap=1, fv_at=76, hold=0, tag_at=3, omask=0, gmul=3, b_wd=True, tw_after=None, tg_after=None, tail_every=12, t_wd=False, t_wo=False, sfl2='', chk=4, tailn=14, w0_after=7, code_pf=True, lead=3,
             h_issue='late', outfl='sc1', w0_read=9, code_size=1024,
             rate_z2=[8]*8, gelu_every=14, post_stats=8, rate_z1=8, z2_extra=8, pre_x=0, fg_every=6)
    o.update(opt or {})
    p = Prog()
    global STAMPN
    STAMPN = []
    JN = []
    def stamp(name):
        if o.get('jitter'):
            JN.append(name)
            p(f"""s_memtime s[98:99]
            s_waitcnt lgkmcnt(0)
            s_lshr_b32 s98, s98, {o['jitter']}
            s_mul_i32 s98, s98, 0x9e3779b1
            s_lshr_b32 s98, s98, 29
            s_cmp_lg_u32 s98, 0
            s_cbranch_scc1 L_jit{len(JN)}
            s_sleep 100
            L_jit{len(JN)}:""", tag='untracked')
        if o.get('enc') == name:
            p("s_memrealtime s[98:99]\ns_waitcnt lgkmcnt(0)", tag='untracked')
        if not stamps: return
        i = len(STAMPN)
        p(f"""s_memrealtime s[98:99]
        s_memtime s[100:101]
        s_waitcnt lgkmcnt(0)
        v_writelane_b32 v30, s98, {i}
        v_writelane_b32 v31, s100, {i}""", tag='untracked')
        if o.get('verbose'): print('model', name, int(p.now), 'pipe', int(sch['pipe']), 'h issued', 16 - (len(Q['h']) + 3) // 4, 'read', len(done_h), 'c left', len(Q['c']) // 4)
        STAMPN.append(name)

    XS = [f'c{n}' for n in o['xs']]
    ring = [f'c{n}' for n in range(18) if f'c{n}' not in XS]
    global WOB
    WOB = [RING + ((len(ring) - 5 + i) % 5) * SL for i in range(5)] + [0, 16384]
    pos = {it: i for i, it in enumerate(ring)}
    freed = set(); pend = set()
    bgq = []
    def legal(it):
        if it in XS: return 'x' in freed
        if it in pos: return pos[it] < NSL or ring[pos[it] - NSL] in freed
        if isinstance(it, str) and it[0] == 'h':
            j = int(it[1:])
            return all(x_ in freed for x_ in ['x'] + XS) if j < 4 else f'h{j-4}' in freed
        if it[0] == 'z': return it[1] < 17 or 'fb' in freed
        if it[0] == 'wo': return all(x in freed for x in WO_DEP[it[1]])
        return True
    gate = {'n': 10**9}
    def pump(n=1):
        while n > 0 and bgq and legal(bgq[0][0]) and gate['n'] > 0:
            bgq.pop(0)[1](); n -= 1; gate['n'] -= 1
    def set_gate(it, extra):
        idx = [i for i, q in enumerate(bgq) if q[0] == it]
        gate['n'] = (idx[-1] + 1 if idx else 0) + extra
    def force(it):
        while any(q[0] == it for q in bgq):
            assert legal(bgq[0][0]), (it, bgq[0][0])
            bgq.pop(0)[1](); gate['n'] -= 1
    def barrier():
        p("s_barrier")
        if o.get('jitter'): stamp('bar')
        freed.update(pend); pend.clear()
    def inter(ins, every):
        for i, l in enumerate(ins):
            p(l)
            if every and i % every == every - 1: pump(1)
    def slot_base(it): return XS.index(it) * SL if it in XS else RING + (pos[it] % NSL) * SL

    def dma(voff, srd, soff, tag, imm=0, flags=''):
        s = f"buffer_load_dwordx4 {voff}, {srd}, {soff} offen"
        if imm: s += f" offset:{imm}"
        if flags: s += ' ' + flags
        p(s + ' lds', tag=tag)

    def q_x():
        for g in range(4):
            for i in range(4):
                def f(g=g, i=i):
                    if i == 0:
                        p(f"""s_xor_b32 {sG1}, {sD}, {g}
                        s_lshl_b32 {sG2}, {sG1}, 17
                        s_add_u32 {sG2}, {sG2}, {sE}
                        s_mul_i32 {sG1}, {sG1}, {4*1040}
                        s_add_u32 m0, {sG1}, {sG0}""")
                    dma(vRow[i], sX, sG2, 'x', imm=i*1040, flags=o['xfl'])
                bgq.append(('x', f))
    def q_chunk(n):
        it = f'c{n}'
        for jj in range(4):
            def f(jj=jj):
                if n < 16:
                    if jj == 0:
                        if n == 8:
                            for r in vWinSrc: p(f"v_subrev_u32 {r}, {sWD}, {r}")
                        p(f"s_add_u32 m0, {sW4K}, {slot_base(it)}")
                    dma(vWinSrc[jj], sWIN, sKC[n & 7], it, imm=jj*1024, flags=o['wfl'])
                else:
                    x = n - 16
                    if jj == 0:
                        p(f"""s_add_u32 {sG0}, {sWDO}, {x*16384}
                        s_mul_i32 {sG1}, {sW}, {4*1040}
                        s_add_u32 m0, {sG1}, {slot_base(it)}""")
                        if x: p(f"v_add_co_u32 v{vWdA}, s[48:49], s50, v{vWdA}\nv_addc_co_u32 v{vWdA+1}, s[48:49], 0, v{vWdA+1}, s[48:49]")
                        p(f"global_load_lds_dwordx4 {vr(vWdA,2)}, off", tag=it)
                    elif jj < 3:
                        dma(vRow[2*jj-1], sHRE, sG0, it, imm=(2*jj-1)*1040, flags=o['wfl'])
                    else:
                        p("s_add_u32 m0, m0, 32")
                        p(f"global_load_lds_dwordx4 {vr(vWdA,2)}, off offset:2048", tag=it)
            bgq.append((it, f))
    def q_wsp(j, tag=None):
        it = f'h{j}'; u, hh, sp = j >> 2, (j >> 1) & 1, j & 1
        for i in range(4):
            def f(i=i):
                if i == 0:
                    p(f"s_xor_b32 {sG2}, {sWSB}, {(u << 12) + (sp << 9) + (hh << 7)}")
                    p(f"s_add_u32 m0, {sWSM[0]}, {(j & 3)*HB}")
                dma(vWspSrc[i], sWSP, sG2, tag or it, imm=i * 1040, flags=o['sfl'])
            bgq.append((it, f))
    def gpf_wsp():
        p(f"""v_lshrrev_b32 v88, 3, v0
        v_lshlrev_b32 v88, 19, v88
        v_and_b32 v89, 7, v0
        v_lshl_add_u32 v88, v89, 7, v88
        s_lshl_b32 {sG1}, {sRB}, 2
        s_and_b32 {sG2}, {sCB}, 3
        s_add_u32 {sG1}, {sG1}, {sG2}
        s_lshl_b32 {sG1}, {sG1}, 12
        s_add_u32 {sG1}, {sG1}, {sW1K}
        s_and_b32 {sG2}, s2, 1
        s_lshl_b32 {sG2}, {sG2}, 22
        s_add_u32 {sG1}, {sG1}, {sG2}""")
        if o['pf0w']: p(f"s_bfm_b64 exec, {64 - o['pf0w']}, {o['pf0w']}")
        p(f"buffer_load_dword v90, v88, {sWSP}, {sG1} offen {o['pffl']}", tag='pf')
        if o['pf0w']: p("s_mov_b64 exec, -1")
        if o['pf_full']:
            p(f"s_xor_b32 {sG1}, {sG1}, {1 << 22}")
            p(f"buffer_load_dword v90, v88, {sWSP}, {sG1} offen {o['pffl']}", tag='pf')
        sch['pipe'] = max(sch['pipe'], p.now) + o['pf_cost']
    def gpf_small():
        assert sch['hmax'] <= 1
        p(f"""s_lshl_b32 {sG1}, {sRB}, 4
        s_and_b32 {sG2}, {sCB}, 3
        s_lshl_b32 {sG2}, {sG2}, 2
        s_add_u32 {sG1}, {sG1}, {sG2}
        s_add_u32 {sG1}, {sG1}, {sW}
        s_and_b32 s4, s2, 1
        v_lshlrev_b32 v88, 7, v0
        s_mul_i32 {sG2}, {sG1}, 3584
        s_mul_i32 s5, s4, 896
        s_add_u32 {sG2}, {sG2}, s5
        s_mov_b64 exec, 0x7f""")
        if o['pf0'] != 2: p(f"buffer_load_dword v90, v88, {sWIN}, {sG2} offen", tag='pf')
        p(f"""s_lshl_b32 {sG2}, {sG1}, 8
        s_lshl_b32 s5, s4, 17
        s_add_u32 {sG2}, {sG2}, s5
        s_and_b32 s5, {sG1}, 6
        s_cmp_eq_u32 s5, 2
        s_cselect_b32 s5, 0x100000, {sG2}
        s_cselect_b32 {sG2}, {sG2}, 0x100000
        s_sub_u32 {sG2}, {sG2}, 512
        s_mov_b64 exec, 3""")
        p(f"buffer_load_dword v90, v88, {sHRE}, s5 offen offset:64", tag='pf')
        p(f"buffer_load_dword v90, v88, {sHIM}, {sG2} offen offset:64", tag='pf')
        p(f"""s_mov_b64 exec, 0xff
        v_lshrrev_b32 v88, 2, v0
        v_lshlrev_b32 v88, 10, v88
        v_and_b32 v89, 3, v0
        v_lshl_add_u32 v88, v89, 7, v88
        s_lshl_b32 {sG2}, {sG1}, 11
        s_lshl_b32 s5, s4, 9
        s_add_u32 {sG2}, {sG2}, s5""")
        p(f"buffer_load_dword v90, v88, {sWOUT}, {sG2} offen", tag='pf')
        p("s_mov_b64 exec, -1")
    Q = {}
    q_x(); Q['x'] = bgq[:]; bgq.clear()
    for n in range(18): q_chunk(n)
    Q['c'] = bgq[:]; bgq.clear()
    for j in range(16): q_wsp(j)
    Q['h'] = bgq[:]; bgq.clear()
    Q['z'] = []; Q['w'] = []; Q['r'] = []
    sch = dict(pipe=0.0, cur=None, cnt=0, need=0, hmax=0, hq=[], hpend=[], hold=False, valu=False)
    landed = {}
    done_h = []
    def issue(qn):
        it, f = Q[qn].pop(0)
        assert legal(it), it
        f()
        t = o['t_win'] if (qn == 'c' and int(it[1:]) < 16) else (o['t_h'] if qn == 'h' else 72)
        sch['pipe'] = max(sch['pipe'], p.now) + t
        landed[it] = sch['pipe'] + o['lat']
        sch['cnt'] = (sch['cnt'] + 1) % 4 if qn not in 'zr' else 0
        sch['cur'] = qn if sch['cnt'] else None
        if not sch['cur']:
            if it == o['pfs_at'] and not any(q[0] == it for q in Q[qn]): gpf_small()
            if o['pf0w'] < 64 and it == o['pfw_at'] and not any(q[0] == it for q in Q[qn]): gpf_wsp()
    def sforce(qn, it):
        while any(q[0] == it for q in Q[qn]):
            issue(sch['cur'] or qn)
    def swait(it, extra=''):
        p.wait_vm([it], extra)
        p.now = max(p.now, landed.get(it, 0))
    def pick():
        if sch['cur']: return sch['cur']
        cok = Q['c'] and legal(Q['c'][0][0])
        hok = Q['h'] and legal(Q['h'][0][0]) and not sch['hold']
        if cok and int(Q['c'][0][0][1:]) < 8: return 'c'
        if cok and int(Q['c'][0][0][1:]) - sch['need'] < o['lead'] and not (sch['hold'] and int(Q['c'][0][0][1:]) >= 8 + o['hold_c']): return 'c'
        if hok: return 'h'
        if cok and not (sch['hold'] and int(Q['c'][0][0][1:]) >= 8 + o['hold_c']): return 'c'
        if Q['z'] and legal(Q['z'][0][0]): return 'z'
        if Q['r']: return 'r'
        if Q['w'] and legal(Q['w'][0][0]): return 'w'
        return None
    def tick():
        for j in sch['hpend'][:]:
            if p.lg_complete(f'h{j}'): freed.add(f'h{j}'); sch['hpend'].remove(j)
            elif (sch['valu'] or o['hwait']) and p.now >= sch['ht'] + 120:
                p.wait_lg(f'h{j}'); freed.add(f'h{j}'); sch['hpend'].remove(j)
        if sch['hq']:
            for _ in range(o['hrate']):
                l, j = sch['hq'].pop(0)
                p(l, tag=f'h{j}')
            if not sch['hq']: sch['hpend'].append(j); sch['ht'] = p.now
        else:
            j = len(done_h)
            if j < 2 * sch['hmax'] and not any(q[0] == f'h{j}' for q in Q['h']) and p.now >= landed[f'h{j}']:
                start_h(j)
        urgent = Q['c'] and int(Q['c'][0][0][1:]) < 8
        if sch['pipe'] - p.now < (o['bmax_z2'] if urgent else o['bmax']):
            qn = pick()
            if qn: issue(qn)
    def start_h(j):
        done_h.append(j)
        sforce('h', f'h{j}')
        swait(f'h{j}')
        for k in range(8):
            b = 32 * (j >> 1) + 4 * k + 2 * (j & 1)
            sch['hq'].append((f"ds_read_b64 {ar(b,2)}, {vWspRd if k < 4 else vWspRd2} offset:{(j&3)*HB + 16*(k&3)}", j))
    def fg(ins):
        sch['valu'] = True
        for l in ins:
            p(l); tick()
        sch['valu'] = False
    def drain_h(upto):
        sch['valu'] = True
        while sch['hq'] or sch['hpend'] or len(done_h) < upto:
            if not sch['hq'] and len(done_h) < upto and (not Q['h'] or legal(Q['h'][0][0]) or not any(q[0] == f'h{len(done_h)}' for q in Q['h'])):
                start_h(len(done_h))
            if not sch['hq']: p.now += 50
            tick()
        sch['valu'] = False

    p.raw(HEADER)
    p.raw(f"; @launch grid=(256,1,1) block=(256,1,1) lds={LDS_TOTAL}")
    p.raw('.amdgcn_target "amdgcn-amd-amdhsa--gfx950"')
    p.raw(f".text\n.globl {NAME}\n.p2align 8\n.type {NAME},@function\n{NAME}:")
    nl = (o['code_size'] + 32 * 128 - 1) // (32 * 128)
    sizes = dict(X=2048*1024+64, HRE=512*1024+64, HIM=512*1024+64, WIN=512*3584, WSP=2048*4096, WOUT=896*1024,
                 OUT=2048*1024, WS=WS_SIZE, DBG=256, BSP=4096, GATE=1024+64)
    p(f"""s_cmp_ge_u32 s2, 256
    s_cbranch_scc1 L_end
    s_load_dwordx2 s[8:9], s[0:1], 0
    s_load_dwordx2 s[20:21], s[0:1], 48
    s_load_dwordx2 s[24:25], s[0:1], 56
    s_getpc_b64 s[4:5]
    s_lshr_b32 {sB}, s2, 3
    s_mul_i32 {sA}, {sB}, {nl}
    v_min_u32 v15, {nl-1}, v0
    v_add_lshl_u32 v15, v15, {sA}, 7
    v_min_u32 v15, {o['code_size'] - 64}, v15
    v_lshrrev_b32 v14, 6, v0""")
    if o['code_pf']: p("global_load_dword v27, v15, s[4:5]", tag='cpf')
    p(f"""v_readfirstlane_b32 {sW}, v14
    v_and_b32 v0, 63, v0
    s_lshr_b32 {sROT}, s2, 5
    s_and_b32 {sA}, s2, 6
    s_lshl_b32 {sA}, {sA}, 2
    s_add_u32 {sRB}, {sA}, {sROT}
    s_and_b32 {sD}, {sB}, 3
    v_lshlrev_b32 {vL16}, 4, v0
    s_lshl_b32 {sA}, {sROT}, 5
    v_xor_b32 v14, {sA}, {vL16}
    v_add_u32 {vRow[0]}, 64, v14
    v_add_u32 {vRow[1]}, 48, v14
    v_add_u32 {vRow[2]}, 32, v14
    v_add_u32 {vRow[3]}, 16, v14
    s_mov_b32 s10, {sizes['X']}
    s_mov_b32 s11, 0x20000
    s_lshl_b32 {sE}, {sW}, 19
    s_lshl_b32 {sA}, {sRB}, 12
    s_add_u32 {sE}, {sE}, {sA}
    s_mul_i32 {sG0}, {sW}, {SL}
    s_waitcnt lgkmcnt(0)
    s_sub_u32 s8, s8, 64
    s_subb_u32 s9, s9, 0""")
    for _ in range(4): issue('x')
    p(f"s_mov_b32 s22, {sizes['WIN']}\ns_mov_b32 s23, 0x20000")
    if o['pf0']:
        p(f"""s_lshl_b32 {sA}, {sRB}, 2
        s_add_u32 {sA}, {sA}, {sD}
        s_lshl_b32 {sA}, {sA}, 2
        s_add_u32 {sA}, {sA}, {sW}
        s_mul_i32 {sA}, {sA}, 3584
        s_and_b32 {sC}, s2, 1
        s_mul_i32 {sC}, {sC}, 896
        s_add_u32 {sA}, {sA}, {sC}
        v_lshrrev_b32 v14, 3, v0
        v_mul_u32_u24 v14, 768, v14
        v_lshl_add_u32 v14, v0, 7, v14
        s_mov_b64 exec, {'0x7f7f' if o['pf0'] == 2 else '0x7f00'}""")
        p(f"buffer_load_dword v27, v14, {sWIN}, {sA} offen", tag='pf')
        p("s_mov_b64 exec, -1")
    p(f"s_mov_b32 s26, {sizes['WSP']}\ns_mov_b32 s27, 0x20000")
    def pf0w():
        p(f"""s_lshl_b32 {sA}, {sRB}, 2
        s_add_u32 {sA}, {sA}, {sD}
        s_lshl_b32 {sA}, {sA}, 2
        s_add_u32 {sA}, {sA}, {sW}
        s_lshl_b32 {sA}, {sA}, 10
        s_and_b32 {sC}, s2, 1
        s_lshl_b32 {sC}, {sC}, 22
        s_add_u32 {sA}, {sA}, {sC}
        v_lshrrev_b32 v14, 3, v0
        v_lshlrev_b32 v14, 19, v14
        v_and_b32 v15, 7, v0
        v_lshl_add_u32 v14, v15, 7, v14
        s_bfm_b64 exec, {o['pf0w'] % 64}, 0""".replace('s_bfm_b64 exec, 0, 0', 's_nop 0'))
        p(f"buffer_load_dword v27, v14, {sWSP}, {sA} offen", tag='pf')
        p("s_mov_b64 exec, -1")
    if o['pf0w'] and not o['pf0w_late']: pf0w()
    for kname, off in KOFF.items():
        if kname not in ('X', 'WIN', 'WSP'): p(f"s_load_dwordx2 s[{SRD[kname]}:{SRD[kname]+1}], s[0:1], {off}")
    p("s_memrealtime s[56:57]")
    for _ in range(o['x_first']): issue('x')
    if o['pf0w'] and o['pf0w_late']: pf0w()
    p(f"""s_and_b32 {sA}, s2, 1
    s_lshl_b32 {sCB}, {sA}, 2
    s_add_u32 {sCB}, {sCB}, {sD}
    s_mov_b32 {sOM}, {sW}
    s_lshl_b32 {sW4K}, {sW}, 12
    s_lshl_b32 {sROT2}, {sROT}, 1
    s_lshl_b32 {sW1K}, {sW}, 10
    v_and_b32 {vC}, 15, v0
    v_lshrrev_b32 {vQ}, 4, v0""")
    for kname, b in SRD.items():
        if kname not in ('X', 'WIN', 'WSP'): p(f"s_mov_b32 s{b+2}, {sizes[kname]}\ns_mov_b32 s{b+3}, 0x20000")
    p(f"""s_waitcnt lgkmcnt(0)
    s_or_b32 {sA}, s2, {sW}
    s_cbranch_scc1 L_notag
    s_or_b32 {sT0}, {sT0}, 1
    s_mul_i32 {sA}, {sT0}, 0x9e3779b1
    s_add_u32 {sT1}, {sT1}, {sA}
    v_mov_b32 v18, {sT0}
    v_mov_b32 v19, {sT1}
    s_mov_b64 exec, 1
    """)
    p(f"buffer_store_dwordx2 v[18:19], off, {sDBG}, 0 sc1", tag='untracked')
    p("s_mov_b64 exec, -1\nL_notag:")
    stamp('start')
    if o['clr_at'] == 'first':
        p(f"""s_lshl_b32 {sA}, {sRB}, 2
        s_add_u32 {sA}, {sA}, {sOM}
        s_mul_i32 {sA}, {sA}, {28*1024}
        s_add_u32 {sA}, {sA}, {WS_H}
        s_lshl_b32 {sB}, {sCB}, 10
        s_add_u32 {sB}, {sB}, {sA}
        s_lshl_b32 {sC}, {sCB}, 9
        s_add_u32 {sC}, {sC}, {sA}
        s_add_u32 {sC}, {sC}, {24*1024}
        v_mov_b32 v168, -1
        v_mov_b32 v169, -1
        v_mov_b32 v170, -1
        v_mov_b32 v171, -1""")
        for i in range(3):
            if i: p(f"s_add_u32 {sB}, {sB}, 8192")
            p(f"buffer_store_dwordx4 v[168:171], {vL16}, {sWS}, {sB} offen sc1", tag='clr')
        p("s_mov_b32 exec_hi, 0")
        p(f"buffer_store_dwordx4 v[168:171], {vL16}, {sWS}, {sC} offen sc1", tag='clr')
        p("s_mov_b64 exec, -1")
    def tlbw():
        sh = o['tlb_sh']
        if o['tlb_w0']: p(f"s_cmp_lg_u32 {sW}, 0\ns_cbranch_scc1 L_notlb")
        tg = 'untracked' if o['tlb_w0'] else 'tlb'
        if sh < 18:
            p(f"v_lshl_add_u32 v26, {sW}, 6, v0\nv_lshlrev_b32 v26, {sh}, v26", tag=tg)
        else:
            p(f"v_lshlrev_b32 v26, {sh}, v0\ns_mov_b64 exec, {hex((1 << (1 << (24 - sh))) - 1) if sh > 18 else -1}", tag=tg)
        for r_ in o['tlb_list']:
            p(f"buffer_load_dword v27, v26, {r_}, 0 offen offset:128 sc1", tag=tg)
        p("s_mov_b64 exec, -1", tag=tg)
        if o['tlb_w0']: p("L_notlb:")
    if o['tlbw'] == 1: tlbw()
    p(f"""
    s_lshl_b32 {sA}, {sW}, 7
    v_add_u32 v15, {sA}, {vQ}
    v_mul_u32_u24 v16, 3584, v15
    s_xor_b32 {sB}, {sCB}, {o['zx']}
    s_mul_i32 {sA}, {sB}, 224
    s_and_b32 {sB}, {sB}, 1
    s_mul_i32 {sWD}, {sB}, {384*o['zx']}
    s_add_u32 {sWD}, {sWD}, {1792 - 192*o['zx']}
    s_lshl_b32 {sC}, {sB}, 5
    s_sub_u32 {sA}, {sA}, {sC}
    s_add_u32 {sA}, {sA}, 1792
    s_and_b32 {sB}, {sW}, 1
    s_lshl_b32 {sB}, {sB}, 3
    v_lshl_add_u32 v14, {vQ}, 1, {sB}
    v_xor_b32 v14, v14, {vC}
    v_lshlrev_b32 v14, 4, v14
    v_add3_u32 {vWinSrc[0]}, v14, v16, {sA}
    v_add_u32 {vWinSrc[1]}, {4*3584-1024}, {vWinSrc[0]}
    v_add_u32 {vWinSrc[2]}, {4*3584-1024}, {vWinSrc[1]}
    v_add_u32 {vWinSrc[3]}, {4*3584-1024}, {vWinSrc[2]}
    """)
    for n in range(8):
        p(f"s_xor_b32 {sA}, {sROT}, {n}\ns_mul_i32 {sKC[n]}, {sA}, {16*3584}")
    if o['c0_early']: sforce('c', 'c0')
    for b in (12, 16, 48): p(f"s_sub_u32 s{b}, s{b}, 64\ns_subb_u32 s{b+1}, s{b+1}, 0")
    setup = lines(f"""
    ; z2n store voffset: (l>>5)*1024 + (2u+p)*256 + c*16, u=(q&1), p=rb&1
    v_lshrrev_b32 v14, 1, {vQ}
    v_lshlrev_b32 v14, 10, v14
    v_and_b32 v15, 1, {vQ}
    v_lshl_add_u32 v14, v15, 9, v14
    v_lshl_add_u32 v14, {vC}, 4, v14
    s_and_b32 {sA}, {sRB}, 1
    s_lshl_b32 {sA}, {sA}, 8
    v_add_u32 {vZst}, {sA}, v14
    s_lshl_b32 {sA}, {sCB}, 2
    s_add_u32 {sA}, {sA}, {sW}
    s_lshl_b32 {sZB}, {sA}, 17
    s_lshl_b32 {sZF}, {sA}, 8
    s_add_u32 {sZF}, {sZF}, {WS_FC}
    s_lshr_b32 {sA}, {sRB}, 1
    s_lshl_b32 {sA}, {sA}, 11
    s_add_u32 {sZST}, {sZB}, {sA}
    s_xor_b32 {sZST}, {sZST}, {o['zx'] << 19}
    s_lshl_b32 {sA}, {sRB}, 2
    s_add_u32 {sA}, {sA}, {sOM}
    s_mul_i32 {sA}, {sA}, {28*1024}
    s_add_u32 {sA}, {sA}, {WS_H}
    s_lshl_b32 {sB}, {sCB}, 10
    s_add_u32 {sHST}, {sA}, {sB}
    s_lshl_b32 {sB}, {sCB}, 9
    s_add_u32 {sHS1}, {sA}, {sB}
    s_add_u32 {sHS1}, {sHS1}, {24*1024}
    s_mov_b32 s66, -1
    s_mov_b32 s67, 0
    """)
    for l in setup: p(l)

    def z2n_stores(base, tag, which=range(4)):
        for i in which:
            if i: p(f"s_add_u32 {sZST}, {sZST}, 32768")
            if i == 3: p(f"s_mov_b64 exec, {sLO32}")
            p(f"buffer_store_dwordx4 {vr(base(i))}, {vZst}, {sWS}, {sZST} offen {o['zfl']}", tag=tag)
            if i == 3: p("s_mov_b64 exec, -1")
    def h_store(i, reg, tag):
        op = f"buffer_store_dwordx4 {vr(reg)}"
        if tag == 'clr' and o['clr_dw']: op = f"buffer_store_dword v{reg}"
        if tag == 'clr' and o['clr_dw'] == 2: return
        if i < 3:
            p(f"s_add_u32 {sA}, {sHST}, {8192*i}")
            p(f"{op}, {vL16}, {sWS}, {sA} offen {o['clrfl'] if tag == 'clr' else o['hfl']}", tag=tag)
        else:
            p(f"s_mov_b64 exec, {sLO32}")
            p(f"{op}, {vL16}, {sWS}, {sHS1} offen {o['clrfl'] if tag == 'clr' else o['hfl']}", tag=tag)
            p("s_mov_b64 exec, -1")

    setup2 = lines(f"""
    v_lshrrev_b32 v14, 2, {vC}
    v_lshl_add_u32 v15, {vQ}, 4, v14
    v_lshlrev_b32 v15, 8, v15
    v_and_b32 v16, 3, {vC}
    v_lshl_add_u32 v15, v16, 3, v15
    v_and_b32 v16, 1, {vQ}
    v_lshl_add_u32 v16, v16, 2, v14
    s_and_b32 {sB}, {sCB}, 1
    s_and_b32 {sC}, {sW}, 1
    s_mul_i32 {sA}, {sC}, 6
    s_add_u32 {sA}, {sA}, {sB}
    s_lshl_b32 {sC}, {sC}, 1
    s_sub_u32 {sC}, 1, {sC}
    s_lshl_b32 {sB}, {sB}, 1
    s_sub_u32 {sB}, 1, {sB}
    s_mul_i32 {sB}, {sB}, {o['zx']}
    """)
    for j in range(4):
        if j: setup2.append(f"s_add_u32 {sA}, {sA}, {sC}")
        setup2 += lines(f"""v_xor_b32 v17, {sA}, v16
        v_lshl_add_u32 {vWinRd[j]}, v17, 5, v15
        s_add_u32 s4, {sA}, {sB}
        v_xor_b32 v17, s4, v16
        v_lshl_add_u32 {vWinRd2[j]}, v17, 5, v15""")
    setup2 += lines(f"""
    v_mul_u32_u24 v14, 1040, {vC}
    v_lshl_add_u32 {vWdRd}, {vQ}, 8, v14
    s_mul_i32 {sA}, {sW}, {SL}
    v_add_u32 {vXrd1}, {sA}, {vWdRd}
    s_xor_b32 {sB}, {sW}, 1
    s_mul_i32 {sA}, {sB}, {SL}
    v_add_u32 {vXrd1p}, {sA}, {vWdRd}
    s_mul_i32 {sA}, {sB}, 3072
    s_add_u32 {sA}, {sA}, {VASM}
    v_add_u32 {vExW}, {sA}, {vL16}
    s_mul_i32 {sA}, {sW}, 3072
    s_add_u32 {sA}, {sA}, {VASM}
    v_add_u32 {vExR}, {sA}, {vL16}
    v_mul_u32_u24 v14, {4*1040}, {vC}
    v_lshrrev_b32 v15, 2, {vC}
    v_lshl_add_u32 v14, v15, 4, v14
    v_lshl_add_u32 v14, {vQ}, 8, v14
    s_mul_i32 {sA}, {sOM}, 1040
    v_add_u32 {vXrd2}, {sA}, v14
    s_xor_b32 {sB}, {sOM}, 1
    s_mul_i32 {sA}, {sB}, 1040
    v_add_u32 {vXrd2p}, {sA}, v14
    """)
    for l in setup2: p(l)
    setup3 = lines(f"""
    s_lshl_b32 {sWDO}, {o['fcb'] if o.get('fcb') is not None else sCB}, 15
    s_add_u32 {sWDO}, {sWDO}, {sW4K}
    v_cmp_gt_u32 vcc, 32, v0
    v_mov_b32 v14, s16
    v_mov_b32 v15, s12
    v_cndmask_b32 v14, v14, v15, vcc
    v_mov_b32 v16, s17
    v_mov_b32 v15, s13
    v_cndmask_b32 v16, v16, v15, vcc
    v_subrev_u32 v15, 64, {vRow[0]}
    v_and_b32 v15, 511, v15
    v_add3_u32 v15, v15, 64, {sWDO}
    v_add_co_u32 v{vWdA}, vcc, v14, v15
    v_addc_co_u32 v{vWdA+1}, vcc, 0, v16, vcc
    v_and_b32 v14, 1, {vC}
    v_cmp_eq_u32 vcc, 1, v14
    v_and_b32 v14, 1, {vQ}
    v_cndmask_b32 v15, v14, {vQ}, vcc
    v_add_u32 v14, 2, v14
    v_add_u32 v16, {vQ}, {vC}
    v_and_b32 v16, 3, v16
    v_cndmask_b32 v14, v14, v16, vcc
    v_mul_u32_u24 v16, 1040, {vC}
    v_lshl_add_u32 {vWdRd}, v15, 8, v16
    v_lshl_add_u32 {vWdRdS}, v14, 8, v16
    s_lshl_b32 {sA}, {sW}, 2
    v_add_u32 v15, {sA}, {vQ}
    v_mul_u32_u24 v15, {VT1}, v15
    v_lshl_add_u32 {vVad[0]}, {vC}, 4, v15""")
    setup3 += lines(f"""
    s_mov_b32 {sA}, {GATE}
    v_lshl_add_u32 {vGateRd}, {vQ}, 8, {sA}
    v_bfe_u32 v16, v0, 3, 1
    v_xor_b32 v16, v16, {vQ}
    v_and_b32 v16, 1, v16
    v_lshlrev_b32 v16, 8, v16
    v_lshl_add_u32 v16, {vQ}, 19, v16
    s_and_b32 {sA}, {sROT2}, 7
    v_and_b32 v14, 7, v0
    v_xor_b32 v14, {sA}, v14
    v_and_b32 v15, 2, {vQ}
    v_lshlrev_b32 v15, 1, v15
    v_xor_b32 v14, v14, v15
    v_lshl_add_u32 v14, v14, 4, v16
    v_add_u32 {vWspSrc[0]}, {sW1K}, v14
    v_add_u32 {vWspSrc[1]}, {4*524288-1040}, {vWspSrc[0]}
    v_add_u32 {vWspSrc[2]}, {4*524288-1040}, {vWspSrc[1]}
    v_add_u32 {vWspSrc[3]}, {4*524288-1040}, {vWspSrc[2]}
    s_lshl_b32 {sA}, {sRB}, 2
    s_add_u32 {sA}, {sA}, {sOM}
    s_lshl_b32 {sWSB}, {sA}, 12
    s_lshr_b32 {sA}, {sROT2}, 3
    s_lshl_b32 {sA}, {sA}, 7
    s_add_u32 {sWSB}, {sWSB}, {sA}
    s_mul_i32 {sWSM[0]}, {sW}, {SL}
    v_lshrrev_b32 v14, 2, {vC}
    v_mul_u32_u24 v14, 1040, v14
    v_and_b32 v15, 3, {vC}
    v_lshl_add_u32 v14, v15, 8, v14
    v_lshrrev_b32 v16, 1, {vQ}
    v_xor_b32 v16, v16, {vC}
    v_and_b32 v16, 1, v16
    v_lshl_add_u32 v14, v16, 7, v14
    v_and_b32 v15, 1, {vQ}
    v_lshl_add_u32 v14, v15, 3, v14
    v_and_b32 v15, 2, {vC}
    v_lshl_add_u32 v14, v15, 5, v14
    v_add_u32 {vWspRd}, {sWSM[0]}, v14
    v_and_b32 v14, 1, {vC}
    v_cmp_ne_u32 {sM1}, 0, v14
    v_and_b32 v14, 2, {vC}
    v_cmp_ne_u32 {sM2}, 0, v14
    v_cmp_gt_u32 {sLT4}, 4, {vC}
    v_cmp_eq_u32 {sC0}, 0, {vC}
    v_and_b32 v17, 3, {vC}
    v_lshl_add_u32 v17, {vQ}, 2, v17
    v_lshlrev_b32 {vSt0}, 4, v17
    s_lshl_b32 {sA}, {sRB}, 13
    s_lshl_b32 {sB}, {sW}, 8
    s_add_u32 {sF}, {sA}, {sB}
    s_add_u32 {sF}, {sF}, {WS_ST}
    """)
    coefc = [f"v_lshlrev_b32 v14, 2, {vQ}"]
    for k in range(4):
        coefc += lines(f"""v_add_u32 v15, {k}, v14
        v_mul_u32_u24 v15, v15, {vC}
        v_and_b32 v15, 15, v15
        v_cvt_f32_u32 v15, v15
        v_mul_f32 v15, {fh(1.0/16)}, v15
        v_cos_f32 v{PK+k}, v15
        v_sin_f32 v{PK+4+k}, v15""")
    coefc += lines(f"""v_cvt_pk_bf16_f32 v{COEF}, v{PK}, v{PK+1}
    v_cvt_pk_bf16_f32 v{COEF+1}, v{PK+2}, v{PK+3}
    v_cvt_pk_bf16_f32 v{COEF+2}, v{PK+4}, v{PK+5}
    v_cvt_pk_bf16_f32 v{COEF+3}, v{PK+6}, v{PK+7}
    v_xor_b32 v{COEF+4}, 0x80008000, v{COEF+2}
    v_xor_b32 v{COEF+5}, 0x80008000, v{COEF+3}
    v_mov_b32 v{COEF+6}, v{COEF}
    v_mov_b32 v{COEF+7}, v{COEF+1}
    v_mov_b32 v{COEF+8}, v{COEF}
    v_mov_b32 v{COEF+9}, v{COEF+1}
    v_mov_b32 v{COEF+10}, v{COEF+4}
    v_mov_b32 v{COEF+11}, v{COEF+5}
    v_mov_b32 v{COEF+12}, v{COEF+4}
    v_mov_b32 v{COEF+13}, v{COEF+5}
    v_xor_b32 v{COEF+14}, 0x80008000, v{COEF}
    v_xor_b32 v{COEF+15}, 0x80008000, v{COEF+1}""")
    ffill = lines(f"""s_lshl_b32 {sA}, {sW}, 5
    s_add_u32 {sA}, {sA}, {sRB}
    s_xor_b32 {sB}, {sA}, 32
    s_cmp_lt_u32 {sCB}, 4
    s_cselect_b32 s4, 0, 0x80000000
    s_and_b32 {sC}, {sW}, 1
    s_lshl_b32 {sC}, {sC}, 6
    v_lshl_add_u32 v164, {vQ}, 2, {sC}
    v_cvt_f32_u32 v164, v164""")
    for u in range(2):
        ffill += lines(f"""v_lshl_add_u32 v165, {vC}, 7, {[sA, sB][u]}
        v_cvt_f32_u32 v165, v165
        v_mul_f32 v165, {fh(1.0/2048)}, v165
        v_xor_b32 v165, s4, v165
        v_mul_f32 v166, v164, v165""")
        for kl in range(4):
            d = FF + 16 * u + 4 * kl
            for i in range(4): ffill.append(f"v_fmamk_f32 v{168+i}, v165, {fh(float(16*kl+i))}, v166")
            for i in range(4): ffill += [f"v_cos_f32 v{d+i}, v{168+i}", f"v_sin_f32 v{168+i}, v{168+i}"]
            for i in range(4): ffill.append(f"v_cvt_pk_bf16_f32 v{d+i}, v{d+i}, v{168+i}")
    for l in setup3 + coefc + (ffill if o['f_where'] == 0 else []): p(l)
    sforce('x', 'x')
    sforce('c', f"c{o['pre_c']}")
    if o['tlbw'] == 2: tlbw()
    p(f"s_mov_b32 m0, {GATE}")
    dma(vRow[0], sGATE, '0', 'gate')
    p("s_mov_b32 s50, 16384")
    def clears():
        for i in range(4): p(f"v_mov_b32 v{FLG+4+i}, -1")
        for i in range(4): h_store(i, FLG + 4, 'clr')
    if o['clr_at'] == 'start': clears()
    if isinstance(o['clr_at'], list):
        for i in range(4): p(f"v_mov_b32 v{232+i}, -1")
    if o['f_where'] == 1:
        for l in ffill: p(l)

    p.wait_vm('x')
    p.now = 0.0; sch['pipe'] = 400.0; landed['c0'] = 0; landed['c1'] = 400; sch['hold'] = o['hold']
    barrier()
    stamp('x_in')
    sforce('c', 'c2')
    xset2 = []
    for n in range(16):
        xset2 += [f"ds_read_b128 {ar(XF1+4*n)}, {vXrd1} offset:{16*n}", f"ds_read_b128 {ar(XF1P+4*n)}, {vXrd1p} offset:{16*n}"]
    for l in xset2[:4]: p(l, tag='x2')
    del xset2[:4]
    for n in range(16):
        xset2 += [f"ds_read_b128 {ar(XF2+4*n)}, {vXrd2} offset:{16*n}", f"ds_read_b128 {ar(XF2P+4*n)}, {vXrd2p} offset:{16*n}"]

    adj = {'win': 0, 'win2': 0, 'wd': 0}
    def zone(kind, regs, slot):
        want = RING + ((slot - RING) // (3 * SL)) * 3 * SL if slot >= RING else 0
        if want != adj[kind]:
            d = want - adj[kind]
            for r in regs:
                p(f"v_add_u32 {r}, {d}, {r}" if d > 0 else f"v_subrev_u32 {r}, {-d}, {r}")
            adj[kind] = want
        return slot - want
    def win_reads(n, ks, fb):
        slot = slot_base(f'c{n}')
        r = []
        if n < 16:
            wr = vWinRd2 if n < 8 else vWinRd
            off = zone('win2' if n < 8 else 'win', wr, slot)
            for j in range(4):
                for h in range(2):
                    r.append(f"ds_read_b64_tr_b16 {vr(fb+4*j+2*h,2)}, {wr[j]} offset:{off + ks*2048 + h*1024}")
        else:
            off = zone('wd', [vWdRd, vWdRdS], slot)
            for j in range(4):
                r.append(f"ds_read_b128 {vr(fb+4*j)}, {vWdRdS if j & 1 else vWdRd} offset:{off + 16*(2*ks+(j>>1))}")
            r.append(f"ds_read_b128 {vr(fb+16)}, {vGateRd} offset:{16*(8*(n-16)+ks)}")
        return r
    def win_mfma(n, ks, fb):
        r = []
        first = ks == 0 and n in (0, 8, 16)
        def c(reg): return '0' if first else vr(reg)
        if n < 16:
            i_ = 4 * (2 * (n & 7) + ks)
            Z = Z2 if n < 8 else Z1
            for j in range(4):
                for xb, a_ in (((XF1 if n < 8 else XF2), Z + 4 * j), ((XF1P if n < 8 else XF2P), Z + 4 * (6 - j))):
                    if j == 3 and xb in (XF1P, XF2P): continue
                    ops = (ar(xb + i_), vr(fb + 4 * j)) if n < 8 else (vr(fb + 4 * j), ar(xb + i_))
                    r.append(f"v_mfma_f32_16x16x32_bf16 {vr(a_)}, {ops[0]}, {ops[1]}, {c(a_)}")
        else:
            for j in range(4):
                acc = ACA + 4 * (n - 16) + 8 * (j & 1)
                r.append(f"v_mfma_f32_16x16x32_bf16 {vr(acc)}, {ar(XF2+4*(2*ks+(j>>1)))}, {vr(fb+4*j)}, {'0' if ks == 0 and j < 2 else vr(acc)}")
            r.insert(2, f"v_mfma_f32_16x16x32_bf16 {vr(ACA+16)}, {vr(fb+16)}, {ar(XF2+4*(8*(n-16)+ks))}, {c(ACA+16)}")
        return r

    def sync_chunk(n, hooks):
        it = f'c{n}'
        sforce('c', it)
        if ('pre', n) in hooks: hooks[('pre', n)]()
        swait(it)
        sch['need'] = n + 1
        if n == 16:
            p(f"""s_or_b32 {sA}, {sW}, {sCB}
            s_cbranch_scc1 L_nopatch
            v_mov_b32 v168, 0xbf803f80
            v_mov_b32 v169, v168
            v_mov_b32 v170, v168
            v_mov_b32 v171, v168
            v_add_u32 v167, {slot_base(it) + 512}, {vL16}
            s_mov_b64 exec, {sLO32}
            ds_write_b128 v167, v[168:171]
            s_mov_b64 exec, -1
            s_waitcnt lgkmcnt(0)
            L_nopatch:""", tag='untracked')
        barrier()
        if ('post', n) in hooks: hooks[('post', n)]()
    pf = []; pfc = [0.0]
    def flush_pf():
        while pf:
            x = pf.pop(0)
            x() if callable(x) else fg([x])
    def pipeline(chunks, hooks):
        S = [(n, ks) for n in chunks for ks in range(2 if n < 16 else 8)]
        def fbuf(i): return (FB if S[i][0] < 16 else FBA)[i % 3]
        for j in range(2):
            if S[j][1] == 0: sync_chunk(S[j][0], hooks)
            for l in win_reads(S[j][0], S[j][1], fbuf(j)): p(l, tag=S[j]); tick()
        for i, (n, ks) in enumerate(S):
            nks = 2 if n < 16 else 8
            if (n, ks) == (15, 0): flush_pf()
            p.wait_lg(S[i])
            if ks == nks - 1: pend.add(f'c{n}')
            if not xset2 and 'x' not in freed and p.lg_complete('x2'): pend.add('x')
            rd = []
            if i + 2 < len(S):
                if S[i+2][1] == 0: sync_chunk(S[i+2][0], hooks)
                rd = [(l, S[i+2]) for l in win_reads(S[i+2][0], S[i+2][1], fbuf(i + 2))]
            if xset2:
                k2 = o['xrate']
                rd = [(l, 'x2') for l in xset2[:k2]] + rd; del xset2[:k2]
            ms = win_mfma(n, ks, fbuf(i))
            per = (len(rd) + len(ms) - 1) // len(ms)
            for j, m in enumerate(ms):
                t0 = p.now
                p(m)
                nr = 0
                for _ in range(per):
                    if rd:
                        l, t = rd.pop(0); p(l, tag=t); nr += 1
                t1 = p.now
                pfc[0] += o['pf_rate'][n >= 16]
                while pf and pfc[0] >= 1:
                    x = pf.pop(0); pfc[0] -= 1
                    x() if callable(x) else p(x)
                if not pf: pfc[0] = 0
                p.now = t0 + max(t1 - t0, 8 + 5 * nr + (p.now - t1), 16)
                tick()
            if ('step', n, ks) in hooks: hooks[('step', n, ks)]()
            if ks == nks - 1 and ('done', n) in hooks: hooks[('done', n)]()

    def exch_write(Z):
        for i in range(3): p(f"ds_write_b128 {vExW}, {vr(Z+16+4*i)} offset:{1024*i}")
        p("s_waitcnt lgkmcnt(0)")
    def exch_read(Z, lab):
        for i in range(3): p(f"ds_read_b128 {vr(Z+16+4*i)}, {vExR} offset:{1024*i}", tag=lab)
    def exch_fix(Z, lab):
        p.wait_lg(lab)
        p(f"s_bitcmp0_b32 {sW}, 0\ns_cbranch_scc1 {lab}")
        for j in range(3):
            for i in range(4): p(f"v_swap_b32 v{Z+4*j+i}, v{Z+4*(6-j)+i}", tag='untracked')
        p(f"{lab}:")
    C0 = -2.0 * math.sqrt(2.0 / math.pi) * math.log2(math.e)
    C1 = C0 * 0.044715
    def gelu(base, n, scalar=False):
        if scalar:
            r = [f"s_mov_b32 s4, {fh(C1)}", f"v_mov_b32 v22, {fh(C0)}"]
            for g in range(0, n, 4):
                for i in range(4): r.append(f"v_mul_f32 v{14+i}, v{base+g+i}, v{base+g+i}")
                for i in range(4): r.append(f"v_fma_f32 v{14+i}, v{14+i}, s4, v22")
                for i in range(4): r.append(f"v_mul_f32 v{14+i}, v{14+i}, v{base+g+i}")
                for i in range(4): r.append(f"v_exp_f32 v{14+i}, v{14+i}")
                for i in range(4): r.append(f"v_add_f32 v{14+i}, 1.0, v{14+i}")
                for i in range(4): r.append(f"v_rcp_f32 v{14+i}, v{14+i}")
                for i in range(4): r.append(f"v_mul_f32 v{base+g+i}, v{base+g+i}, v{14+i}")
            return r
        r = lines(f"""s_mov_b32 s4, {fh(C1)}
        s_mov_b32 s5, {fh(C1)}
        v_mov_b32 v22, {fh(C0)}
        v_mov_b32 v23, {fh(C0)}""")
        for g in range(0, n, 4):
            x = [vr(base+g, 2), vr(base+g+2, 2)]; t = [vr(14, 2), vr(16, 2)]
            for i in range(2): r.append(f"v_pk_mul_f32 {t[i]}, {x[i]}, {x[i]}")
            for i in range(2): r.append(f"v_pk_fma_f32 {t[i]}, {t[i]}, s[4:5], v[22:23]")
            for i in range(2): r.append(f"v_pk_mul_f32 {t[i]}, {t[i]}, {x[i]}")
            for i in range(4): r.append(f"v_exp_f32 v{14+i}, v{14+i}")
            for i in range(2): r.append(f"v_pk_add_f32 {t[i]}, {t[i]}, 1.0 op_sel_hi:[1,0]")
            for i in range(4): r.append(f"v_rcp_f32 v{14+i}, v{14+i}")
            for i in range(2): r.append(f"v_pk_mul_f32 {x[i]}, {x[i]}, {t[i]}")
        return r
    def rowred(regs, rors):
        return [f"v_add_f32_dpp {r}, {r}, {r} row_ror:{k} row_mask:0xf bank_mask:0xf" for k in rors for r in regs]

    def get_tag():
        p.wait_vm('tag')
        p(f"""s_mov_b32 {sCNT}, 0
        L_tag:
        v_readfirstlane_b32 {sT0}, v{vTag}
        v_readfirstlane_b32 {sT1}, v{vTag+1}
        s_cmp_lg_u32 {sT0}, 0
        s_cbranch_scc1 L_tagok
        s_add_u32 {sCNT}, {sCNT}, 1
        s_cmp_ge_u32 {sCNT}, {SPIN_LIMIT}
        s_cbranch_scc1 L_tagok""")
        p(f"buffer_load_dwordx2 {vr(vTag,2)}, off, {sDBG}, 0 sc1", tag='untracked')
        p("""s_waitcnt vmcnt(0)
        s_branch L_tag
        L_tagok:""")
    def flag_store(base):
        p(f"""s_lshl_b32 {sA}, s2, 3
        s_add_u32 {sA}, {sA}, {base}
        s_cmp_eq_u32 {sW}, 0
        s_cselect_b32 {sA}, {sA}, {WS_SIZE}
        v_mov_b32 v18, {sT0}
        v_mov_b32 v19, {sT1}
        s_mov_b64 exec, 1""")
        p(f"buffer_store_dwordx2 v[18:19], off, {sWS}, {sA} sc1", tag='flag')
        p("s_mov_b64 exec, -1")
    def flag_issue(base, r, tag):
        p(f"s_mov_b32 {sA}, {base}")
        p(f"buffer_load_dwordx4 {vr(r)}, {vL16}, {sWS}, {sA} offen sc1", tag=tag)
        p(f"buffer_load_dwordx4 {vr(r+4)}, {vL16}, {sWS}, {sA} offen offset:1024 sc1", tag=tag)
    def flag_ops(r):
        ops = [f"v_xor_b32 v{r+i}, {sT0 if i % 2 == 0 else sT1}, v{r+i}" for i in range(8)]
        ops += [f"v_or3_b32 v{r}, v{r}, v{r+1}, v{r+2}", f"v_or3_b32 v{r+3}, v{r+3}, v{r+4}, v{r+5}",
                f"v_or3_b32 v{r}, v{r}, v{r+6}, v{r+7}", f"v_or_b32 v{r}, v{r}, v{r+3}", f"v_cmp_ne_u32 vcc, 0, v{r}"]
        return ops
    def flag_check(base, r, tag):
        lab = f"L_fw{base:x}"
        p.wait_vm(tag)
        p(f"s_mov_b32 {sCNT}, 0\n{lab}:")
        for l in flag_ops(r): p(l)
        p(f"""s_cbranch_vccz {lab}_ok
        s_add_u32 {sCNT}, {sCNT}, 1
        s_cmp_ge_u32 {sCNT}, {SPIN_LIMIT}
        s_cbranch_scc1 {lab}_ok""")
        flag_issue(base, r, 'untracked')
        p(f"s_waitcnt vmcnt(0)\ns_branch {lab}\n{lab}_ok:")

    def pack_tiles(src, swap_pairs):
        r = []
        for ft in range(7):
            r.append(f"v_cvt_pk_bf16_f32 v{PK+2*ft}, v{src+4*ft}, v{src+4*ft+1}")
            r.append(f"v_cvt_pk_bf16_f32 v{PK+2*ft+1}, v{src+4*ft+2}, v{src+4*ft+3}")
        if not swap_pairs:
            for i in range(14): r.append(f"v_min_u32 v{PK+i}, -2, v{PK+i}")
        r += [f"v_mov_b32 v{PK+14}, v{PK+12}", f"v_mov_b32 v{PK+15}, v{PK+13}"]
        for pr in (range(4) if swap_pairs else [3]):
            r.append(f"v_permlane32_swap_b32 v{PK+4*pr}, v{PK+4*pr+2}")
            r.append(f"v_permlane32_swap_b32 v{PK+4*pr+1}, v{PK+4*pr+3}")
        return r

    hk = {('post', o['tag_at']): lambda: p(f"buffer_load_dwordx2 {vr(vTag,2)}, off, {sDBG}, 0 sc1", tag='tag')}
    if o.get('fine'):
        stamp('xrd')
        for n in range(7): hk[('done', n)] = (lambda n=n: stamp(f'c{n}'))
    if isinstance(o['clr_at'], list):
        for i_, n_ in enumerate(o['clr_at']):
            if n_ < 8: hk[('done', n_)] = (lambda i_=i_: h_store(i_, 232, 'clr'))
    if o['hfine'] > 1: hk[('done', 3)] = lambda: sch.update(hmax=1)
    pipeline(range(8), hk)
    sch['hmax'] = 4; sch['hold'] = o['hold'] > 1
    exch_write(Z2)
    barrier()
    exch_read(Z2, 'L_ex2')
    stamp('z2_mfma')
    get_tag()
    p(f"v_and_b32 v14, 2, {vC}\nv_lshlrev_b32 v14, 6, v14\nv_sub_u32 v14, 64, v14\nv_add_u32 {vWspRd2}, v14, {vWspRd}")
    if o['clr_at'] == 'gelu': clears()
    g_ = gelu(Z2, 28)
    fg(g_[:4+18*4])
    p.wait_lg('L_ex2')
    fg(g_[4+18*4:])
    exch_fix(Z2, 'L_ex2')
    S2 = [vr(14, 2), vr(16, 2)]
    st = []
    if o['stat1']:
        M2_ = [vr(MEANI, 2), vr(MEANI + 2, 2)]
        for h in range(2): st.append(f"v_pk_add_f32 {M2_[h]}, {vr(Z2+2*h,2)}, {vr(Z2+4+2*h,2)}")
        for h in range(2): st.append(f"v_pk_mul_f32 {S2[h]}, {vr(Z2+2*h,2)}, {vr(Z2+2*h,2)}")
        for ft in range(1, 7):
            if ft > 1:
                for h in range(2): st.append(f"v_pk_add_f32 {M2_[h]}, {M2_[h]}, {vr(Z2+4*ft+2*h,2)}")
            for h in range(2): st.append(f"v_pk_fma_f32 {S2[h]}, {vr(Z2+4*ft+2*h,2)}, {vr(Z2+4*ft+2*h,2)}, {S2[h]}")
        st += rowred([f'v{MEANI+r}' for r in range(4)] + [f'v{14+r}' for r in range(4)], [8, 4, 2, 1])
    else:
        for h in range(2): st.append(f"v_pk_add_f32 {S2[h]}, {vr(Z2+2*h,2)}, {vr(Z2+4+2*h,2)}")
        for ft in range(2, 7):
            for h in range(2): st.append(f"v_pk_add_f32 {S2[h]}, {S2[h]}, {vr(Z2+4*ft+2*h,2)}")
        S = [f'v{14+r}' for r in range(4)]
        st += rowred(S, [8, 4, 2, 1])
        for r in range(4): st.append(f"v_mul_f32 v{MEANI+r}, {fh(1.0/112)}, {S[r]}")
        for ft in range(7):
            for h in range(2): st.append(f"v_pk_add_f32 {vr(Z2+4*ft+2*h,2)}, {vr(Z2+4*ft+2*h,2)}, {vr(MEANI+2*h,2)} neg_lo:[0,1] neg_hi:[0,1]")
        for h in range(2): st.append(f"v_pk_mul_f32 {S2[h]}, {vr(Z2+2*h,2)}, {vr(Z2+2*h,2)}")
        for ft in range(1, 7):
            for h in range(2): st.append(f"v_pk_fma_f32 {S2[h]}, {vr(Z2+4*ft+2*h,2)}, {vr(Z2+4*ft+2*h,2)}, {S2[h]}")
        st += rowred(S, [8, 4, 2, 1])
    st += lines(f"""
    v_cndmask_b32 v18, v{MEANI}, v{MEANI+1}, {sM1}
    v_cndmask_b32 v19, v{MEANI+2}, v{MEANI+3}, {sM1}
    v_cndmask_b32 v24, v18, v19, {sM2}
    v_cndmask_b32 v18, v14, v15, {sM1}
    v_cndmask_b32 v19, v16, v17, {sM1}
    v_cndmask_b32 v26, v18, v19, {sM2}
    v_mov_b32 v25, {sT0}
    v_mov_b32 v27, {sT1}
    s_lshl_b32 {sB}, {sCB}, 10
    s_add_u32 {sA}, {sF}, {sB}
    """)
    fg(st)
    p(f"s_mov_b64 exec, {sLT4}")
    p(f"buffer_store_dwordx4 v[24:27], {vSt0}, {sWS}, {sA} offen sc1", tag='st')
    p(f"""s_mov_b64 exec, -1
    v_lshrrev_b32 v18, 2, {vC}
    v_lshl_add_u32 {vSt0}, v18, 10, {vSt0}
    v_add_u32 {vSt1}, 4096, {vSt0}""")
    p(f"""s_lshl_b32 {sA}, {sRB}, 2
    s_add_u32 {sA}, {sA}, {sOM}
    s_lshl_b32 {sA}, {sA}, 1
    v_lshlrev_b32 v14, 8, {vC}""")
    p(f"buffer_load_ushort {vBsp}, v14, {sBSP}, {sA} offen", tag='bsp')
    if o['t_wo']:
        p(f"""s_lshr_b32 {sA}, s2, 3
        s_lshl_b32 {sA}, {sA}, 2
        s_add_u32 {sA}, {sA}, {sW}
        s_mul_i32 {sA}, {sA}, 7168
        s_and_b32 {sB}, s2, 1
        s_lshl_b32 {sB}, {sB}, 9
        s_add_u32 {sA}, {sA}, {sB}
        v_lshrrev_b32 v14, 2, v0
        v_lshlrev_b32 v14, 10, v14
        v_and_b32 v15, 3, v0
        v_lshl_add_u32 v14, v15, 7, v14
        s_mov_b64 exec, 0xfffffff""")
        p(f"buffer_load_dword v27, v14, {sWOUT}, {sA} offen", tag='touch')
        p("s_mov_b64 exec, -1")
    if o['clr_at'] == 'stats': clears()
    stamp('stats_pub')

    def stat_issue(tag):
        p(f"buffer_load_dwordx4 {vr(FLG)}, {vSt0}, {sWS}, {sF} offen sc1", tag=tag)
        p(f"buffer_load_dwordx4 {vr(FLG+4)}, {vSt1}, {sWS}, {sF} offen sc1", tag=tag)
    def normalize_publish():
        p.wait_vm('stl')
        F = FLG
        p(f"""s_mov_b32 {sCNT}, 0
        L_stat:
        v_xor_b32 v24, {sT0}, v{F+1}
        v_xor_b32 v25, {sT1}, v{F+3}
        v_xor_b32 v26, {sT0}, v{F+5}
        v_xor_b32 v27, {sT1}, v{F+7}
        v_or3_b32 v24, v24, v25, v26
        v_or_b32 v24, v24, v27
        v_cmp_ne_u32 vcc, 0, v24
        s_cbranch_vccz L_statok
        s_add_u32 {sCNT}, {sCNT}, 1
        s_cmp_ge_u32 {sCNT}, {SPIN_LIMIT}
        s_cbranch_scc1 L_statok""")
        stat_issue('untracked')
        p("s_waitcnt vmcnt(0)\ns_branch L_stat\nL_statok:")
        stamp('stats_in')
        if o['stat1']:
            r = [f"v_add_f32 v24, v{F}, v{F+4}", f"v_add_f32 v17, v{F+2}, v{F+6}"] + rowred(['v24', 'v17'], [4, 8])
            r += lines(f"""v_mul_f32 v24, {fh(1.0/896)}, v24
            v_mul_f32 v17, {fh(1.0/896)}, v17
            v_fma_f32 v17, -v24, v24, v17
            v_max_f32 v17, 0, v17
            v_add_f32 v17, {fh(1e-5)}, v17
            v_rsq_f32 v25, v17
            v_mul_f32 v24, -v24, v25""".replace('v_mul_f32 v24, -v24, v25', 'v_mul_f32_e64 v24, -v24, v25'))
            for i in range(4):
                r.append(f"v_mov_b32_dpp v{14+i}, v25 quad_perm:[{i},{i},{i},{i}] row_mask:0xf bank_mask:0xf")
            for i in range(4):
                r.append(f"v_mov_b32_dpp v{18+i}, v24 quad_perm:[{i},{i},{i},{i}] row_mask:0xf bank_mask:0xf")
        else:
            r = [f"v_add_f32 v24, v{F}, v{F+4}"] + rowred(['v24'], [4, 8])
            r += lines(f"""v_mul_f32 v24, {fh(0.125)}, v24
        v_sub_f32 v16, v{F}, v24
        v_sub_f32 v20, v{F+4}, v24
        v_mul_f32 v16, v16, v16
        v_fmac_f32 v16, v20, v20
        v_add_f32 v17, v{F+2}, v{F+6}
        v_fmac_f32 v17, {fh(112.0)}, v16""")
            r += rowred(['v17'], [4, 8])
            r += lines(f"""v_mov_b32 v18, {fh(1e-5)}
        v_fmac_f32 v18, {fh(1.0/896)}, v17
        v_rsq_f32 v25, v18""")
            for i in range(4):
                r.append(f"v_mov_b32_dpp v{18+i}, v24 quad_perm:[{i},{i},{i},{i}] row_mask:0xf bank_mask:0xf")
            for i in range(4):
                r.append(f"v_mov_b32_dpp v{14+i}, v25 quad_perm:[{i},{i},{i},{i}] row_mask:0xf bank_mask:0xf")
            for h in range(2): r.append(f"v_pk_add_f32 {vr(18+2*h,2)}, {vr(MEANI+2*h,2)}, {vr(18+2*h,2)} neg_lo:[0,1] neg_hi:[0,1]")
            for h in range(2): r.append(f"v_pk_mul_f32 {vr(18+2*h,2)}, {vr(18+2*h,2)}, {vr(14+2*h,2)}")
        for ft in range(7):
            for h in range(2): r.append(f"v_pk_fma_f32 {vr(Z2+4*ft+2*h,2)}, {vr(Z2+4*ft+2*h,2)}, {vr(14+2*h,2)}, {vr(18+2*h,2)}")
        r += pack_tiles(Z2, True)
        pf.extend(r)
        if not o['norm_fill']: flush_pf()
        for i_ in range(4):
            pf.append(lambda i_=i_: z2n_stores(lambda i: PK + 4 * i, 'z2n', [i_]))
            if i_ < 3: pf.extend([lambda: None] * o['zst_gap'])
        pf.append(lambda: stamp('z2n_pub'))
        if not o['zst_gap']: flush_pf()

    if o['raw']:
        p(f"""v_lshrrev_b32 v14, 3, v0
        v_lshlrev_b32 v15, 10, v14
        v_and_b32 v14, 7, v0
        v_lshlrev_b32 v16, 1, {vQ}
        v_xor_b32 v14, v14, v16
        v_lshl_add_u32 v237, v14, 4, v15
        s_lshr_b32 {sA}, {sW}, 1
        s_mul_i32 {sA}, {sA}, {448*1024}
        s_lshl_b32 {sB}, {sCB}, 7
        s_add_u32 {sA}, {sA}, {sB}
        s_and_b32 {sB}, {sW}, 1
        s_mul_i32 {sB}, {sB}, {112*1024}
        s_add_u32 s40, {sA}, {sB}
        s_add_u32 s41, s40, {sB}""")
        for i_ in range(8):
            def f(i_=i_):
                jj = i_ & 3
                if i_ < 4: p(f"s_add_u32 s42, s40, {(224 + 64 + 8*jj)*1024}")
                else: p(f"s_add_u32 s42, s41, {(112*(jj & 1) + 96 + 8*(jj >> 1))*1024}")
                p(f"buffer_load_dwordx4 {vr(FF+4*i_)}, v237, {sWOUT}, s42 offen", tag='raw')
            Q['r'].append(('raw', f))
    sch['hold'] = False
    hooks = {('post', o['poll_after']): lambda: stat_issue('stl'), ('done', o['poll_after']): normalize_publish}
    def zflag_store():
        assert p.vm.count('z2n') == 4
        p.wait_vm('z2n')
        p(f"""s_lshl_b32 {sA}, {sRB}, 3
        s_add_u32 {sA}, {sA}, {sZF}
        s_xor_b32 {sA}, {sA}, {o['zx'] << 10}
        v_mov_b32 v168, {sT0}
        v_mov_b32 v169, {sT1}
        s_mov_b64 exec, 1""")
        p(f"buffer_store_dwordx2 v[168:169], off, {sWS}, {sA} sc1", tag='flag')
        p("s_mov_b64 exec, -1")
    def zflag_issue(tag):
        p(f"buffer_load_dwordx2 {vr(FLG,2)}, v{FLG+2}, {sWS}, {sZF} offen sc1", tag=tag)
    def zflag_pre():
        p(f"v_and_b32 v{FLG+2}, 31, v0\nv_lshlrev_b32 v{FLG+2}, 3, v{FLG+2}")
        zflag_issue('fc')
    def zflag_check():
        p.wait_vm('fc')
        p(f"""s_mov_b32 {sCNT}, 0
        L_zf:
        v_xor_b32 v{FLG}, {sT0}, v{FLG}
        v_xor_b32 v{FLG+1}, {sT1}, v{FLG+1}
        v_or_b32 v{FLG}, v{FLG}, v{FLG+1}
        v_cmp_ne_u32 vcc, 0, v{FLG}
        s_cbranch_vccz L_zf_ok
        s_add_u32 {sCNT}, {sCNT}, 1
        s_cmp_ge_u32 {sCNT}, {SPIN_LIMIT}
        s_cbranch_scc1 L_zf_ok""")
        zflag_issue('untracked')
        p("s_waitcnt vmcnt(0)\ns_branch L_zf\nL_zf_ok:", tag='untracked')
        if stamps: p(f"v_writelane_b32 v30, {sCNT}, 30")
    PT = [(0, 1), (2, 3), (4, 5), (6,)]
    U = [(ps, k, tl) for ps in range(4) for k in range(16) for tl in range(len(PT[ps]))]
    NR = 21
    def zreg(n): return ZR + 4 * (n % NR)
    def z_load(n):
        ps, k, tl = U[n]
        if k == 0 and tl == 0 and ps: p(f"v_add_u32 {vZld}, 32768, {vZld}")
        p(f"buffer_load_dwordx4 {vr(zreg(n))}, {vZld}, {sWS}, {sZK[k]} offen offset:{1024*tl} {o['ldfl']}", tag=('z', n))
    def z_setup():
        assert not Q['c']
        while sch['cur']: issue(sch['cur'])
        while Q['r']: issue('r')
        zflag_check()
        stamp('zf_ok')
        p(f"v_add_u32 {vZld}, {sZB}, {vL16}")
        p(f"s_lshl_b32 {sZK[0]}, {sROT2}, 11")
        for k in range(1, 16): p(f"s_xor_b32 {sZK[k]}, {sZK[0]}, {k << 11}")
        for n in range(NR): Q['z'].append((('z', n), lambda n=n: z_load(n)))
    def w_setup():
        p(f"""v_lshrrev_b32 v14, 3, v0
    v_lshlrev_b32 v15, 10, v14
    v_and_b32 v14, 7, v0
    v_lshlrev_b32 v16, 1, {vQ}
    v_xor_b32 v14, v14, v16
    v_lshl_add_u32 {vWoSrc[0]}, v14, 4, v15
    v_add_u32 {vWoSrc[1]}, 7168, {vWoSrc[0]}
    v_add_u32 {vWoSrc[2]}, 7168, {vWoSrc[1]}
    v_add_u32 {vWoSrc[3]}, 7168, {vWoSrc[2]}
    s_lshr_b32 {sA}, {sW}, 1
    s_mul_i32 {sA}, {sA}, {448*1024}
    s_lshl_b32 {sB}, {o['fcb'] if o.get('fcb') is not None else sCB}, 7
    s_add_u32 {sA}, {sA}, {sB}
    s_and_b32 {sB}, {sW}, 1
    s_mul_i32 {sB}, {sB}, {112*1024}
    s_add_u32 {sWO}, {sA}, {sB}
    s_add_u32 {sWO1}, {sWO}, {sB}""")
        for pc in (o['wo_order'][:5] if o['raw'] else o['wo_order']):
            for jj in range(4):
                def f(pc=pc, jj=jj):
                    if jj == 0: p(f"s_add_u32 m0, {sW4K}, {WOB[pc]}")
                    if pc < 6:
                        if jj == 0: p(f"s_add_u32 {sG0}, {sWO}, {(224*(pc & 1) + 32*(pc >> 1))*1024}")
                    else:
                        p(f"s_add_u32 {sG0}, {sWO1}, {(112*(jj & 1) + 96 + 8*(jj >> 1) - 8*jj)*1024}")
                    dma(vWoSrc[jj], sWOUT, sG0, ('wo', pc), imm=jj*1024)
                Q['w'].append((('wo', pc), f))
    def addhook(key, f):
        g = hooks.get(key)
        hooks[key] = f if g is None else (lambda: (g(), f()))
    addhook(('done', o['poll_after'] + o['zf_delay']), zflag_store)
    addhook(('step', 17, 3), zflag_pre)
    addhook(('done', 17), z_setup)
    addhook(('done', 15), lambda: (exch_write(Z1), sch.update(hmax=6)))
    addhook(('post', 17), lambda: exch_read(Z1, 'L_ex1'))
    if o['hfine']:
        addhook(('done', 11), lambda: sch.update(hmax=5))
        addhook(('step', 17, 3), lambda: sch.update(hmax=7))
    addhook(('step', 17, 1), lambda: exch_fix(Z1, 'L_ex1'))
    addhook(('done', 15), w_setup)
    if isinstance(o['clr_at'], list):
        for i_, n_ in enumerate(o['clr_at']):
            if n_ >= 8: addhook(('done', n_), lambda i_=i_: h_store(i_, 232, 'clr'))
    addhook(('done', 15), lambda: stamp('z1_mfma'))
    if o['gelu_fill']: addhook(('done', 15), lambda: pf.extend(gelu(Z1, 28, o['gelu_fill'] == 2)))
    pipeline(range(8, 18), hooks)
    sch['hmax'] = 8
    flush_pf()
    barrier()
    stamp('a_mfma')
    def code_pf2(lab):
        rem = o['code_size'] - o['pf2_off'].get(lab, 0) - 64
        nl2 = (rem + 32 * 128 - 1) // (32 * 128)
        p(f"""{lab}:
        s_getpc_b64 s[44:45]
        s_lshr_b32 s46, s2, 3
        s_mul_i32 s46, s46, {nl2}
        v_min_u32 v167, {nl2-1}, v0
        v_add_lshl_u32 v167, v167, s46, 7
        v_min_u32 v167, {max(rem - 64, 65)}, v167""")
        p("global_load_dword v167, v167, s[44:45]", tag='cpf')
    if o['pf2']: code_pf2('Lpf2a')
    r = lines(f"""v_mul_f32 v14, {fh(-math.log2(math.e))}, v{ACA+16}
    v_exp_f32 v14, v14
    v_add_f32 v14, 1.0, v14
    v_rcp_f32 {vG}, v14""")
    for x in range(2):
        r += lines(f"""v_cvt_pk_bf16_f32 v{CFR+4*x}, v{ACA+4*x}, v{ACA+4*x+1}
        v_cvt_pk_bf16_f32 v{CFR+4*x+1}, v{ACA+4*x+2}, v{ACA+4*x+3}
        v_cvt_pk_bf16_f32 v{CFR+4*x+2}, v{ACA+8+4*x}, v{ACA+8+4*x+1}
        v_cvt_pk_bf16_f32 v{CFR+4*x+3}, v{ACA+8+4*x+2}, v{ACA+8+4*x+3}""")
    for x in range(2):
        for var in range(2):
            r.append(f"v_mfma_f32_16x16x32_bf16 {vr(G2O+8*x+4*var)}, {vr(COEF+4*var)}, {vr(CFR+4*x)}, 0")
    r += lines(f"""v_lshlrev_b32 v24, 10, {vQ}
    v_lshl_add_u32 v24, {vC}, 4, v24
    s_lshl_b32 {sA}, {sOM}, 2
    s_add_u32 {sA}, {sA}, {VASM}
    v_add_u32 v24, {sA}, v24""")
    fg(r)
    p(f"""s_cmp_lg_u32 {sCB}, 0
    s_cbranch_scc1 L_nofix
    v_mfma_f32_16x16x32_bf16 {vr(G2O+16)}, {vr(COEF+8)}, {vr(CFR)}, 0
    v_mfma_f32_16x16x32_bf16 {vr(G2O+20)}, {vr(COEF+12)}, {vr(CFR)}, 0
    s_lshl_b32 {sA}, {sRB}, 2
    s_add_u32 {sA}, {sA}, {sOM}
    s_lshl_b32 {sA}, {sA}, 6
    s_add_u32 {sA}, {sA}, {WS_G}
    v_lshlrev_b32 v14, 2, {vC}
    s_mov_b64 exec, 0xffff""", tag='untracked')
    p(f"buffer_store_dword {vG}, v14, {sWS}, {sA} offen sc1", tag='untracked')
    p(f"s_mov_b64 exec, {sC0}", tag='untracked')
    for k in range(4):
        re1, im1, re2, im2 = f"v{G2O+k}", f"v{G2O+4+k}", f"v{G2O+16+k}", f"v{G2O+20+k}"
        p(f"""v_add_f32 v14, {re1}, {re2}
        v_add_f32 v15, {im1}, {im2}
        v_sub_f32 v16, {im1}, {im2}
        v_sub_f32 v17, {re2}, {re1}
        v_mul_f32 {re1}, 0.5, v14
        v_mul_f32 {im1}, 0.5, v15
        v_mul_f32 v16, 0.5, v16
        v_mul_f32 v17, 0.5, v17
        v_cvt_pk_bf16_f32 v16, v16, v17
        ds_write_b32 v24, v16 offset:{8192 + k*256}""", tag='untracked')
    p("s_mov_b64 exec, -1\nL_nofix:\ns_nop 7")
    freed.add('fb')
    r = []
    k = 0
    for x in range(2):
        for i in range(4):
            t = f"v{16 + (k % 8)}"; k += 1
            r.append(f"v_cvt_pk_bf16_f32 {t}, v{G2O+8*x+i}, v{G2O+8*x+4+i}")
            r.append(f"ds_write_b32 v24, {t} offset:{x*4096 + i*256}")
    fg(r)
    p("s_waitcnt lgkmcnt(0)")
    barrier()
    p(f"""s_add_u32 {sA}, {sW1K}, {VASM}
    v_add_u32 v14, {sA}, {vL16}""")
    for it in range(3):
        p(f"ds_read_b128 {vr(G2O+4*it)}, v14 offset:{it*4096}")
    p(f"""s_lshl_b32 {sB}, {sRB}, 8
    s_add_u32 {sB}, {sB}, {WS_V}
    s_lshl_b32 {sA}, {sCB}, 14
    s_add_u32 {sA}, {sA}, {sB}
    s_add_u32 {sC}, {sA}, 8192
    s_add_u32 {sB}, {sB}, {16*8192}
    s_cmp_eq_u32 {sCB}, 0
    s_cselect_b32 {sB}, {sB}, {WS_SIZE}""")
    def v_stores():
        p("s_waitcnt lgkmcnt(0)")
        p(f"buffer_store_dwordx4 {vr(G2O)}, {vVad[0]}, {sWS}, {sA} offen {o['zfl']}", tag='vst')
        p(f"buffer_store_dwordx4 {vr(G2O+4)}, {vVad[0]}, {sWS}, {sC} offen {o['zfl']}", tag='vst')
        p(f"s_mov_b64 exec, {sC0}")
        p(f"buffer_store_dwordx4 {vr(G2O+8)}, {vVad[0]}, {sWS}, {sB} offen {o['zfl']}", tag='vst')
        p("s_mov_b64 exec, -1")
    if not o['v_late']: v_stores()
    if o['clr_at'] == 'v': clears()
    stamp('v_pub')
    r = ([] if o['gelu_fill'] else gelu(Z1, 28)) + [f"v_sub_f32 v24, 1.0, {vG}", "v_mov_b32 v25, v24"]
    for i in range(14): r.append(f"v_pk_mul_f32 {vr(Z1+2*i,2)}, {vr(Z1+2*i,2)}, v[24:25]")
    gel1 = r

    gel1 += lines(f"""v_lshlrev_b32 v{BS4}, 16, {vBsp}
    v_mov_b32 v{BS4+1}, v{BS4}
    v_mov_b32 v{BS4+2}, v{BS4}
    v_mov_b32 v{BS4+3}, v{BS4}""")
    fg(gel1)
    drain_h(16)
    while sch['cur']: issue(sch['cur'])
    while Q['z']: issue('z')
    if o['v_late']: v_stores()
    pend.add('xh')
    stamp('wsp_in')

    def acc(ps, u, tl): return ACC + (ps & 1) * 32 + (u * 2 + tl) * 4
    vRw = ['v10', 'v28', 'v29']; vRr = 'v2'; vVld = 'v5'; vGa = 'v25'
    fill = []
    for u in range(1, 4):
        fill += lines(f"""s_xor_b32 {sB}, {sW}, {u}
        s_mul_i32 {sB}, {sB}, 6144
        v_add_u32 {vRw[u-1]}, {sB}, {vL16}""")
    fill += lines(f"""s_mul_i32 {sB}, {sW}, 6144
    v_add_u32 {vRr}, {sB}, {vL16}
    s_lshl_b32 {sB}, {sW}, 5
    s_add_u32 {sTAU[0]}, {sB}, {sRB}
    s_xor_b32 {sTAU[1]}, {sTAU[0]}, 32""")
    fill.append(lambda: (barrier()))
    if o['raw']:
        fill.append(lambda: (p.wait_vm('raw'), p(f"v_add_u32 v17, {sW4K}, {vL16}")))
        for i_ in range(8): fill += [f"ds_write_b128 v17, {vr(FF+4*i_)} offset:{WOB[5 + i_ // 4] + (i_ & 3)*1024}", 's_nop 0']
        fill.append("s_waitcnt lgkmcnt(0)")
    fill.append(lambda: p(f"""s_sub_u32 {sB}, 0, {sRB}
    s_lshl_b32 {sC}, {sCB}, 2
    s_sub_u32 {sE}, 31, {sC}
    s_cmp_lt_u32 {sCB}, 4
    s_cselect_b32 {sB}, {sRB}, {sB}
    s_cselect_b32 {sC}, {sC}, {sE}
    s_cselect_b32 {sVS}, 1, -1
    s_cselect_b64 vcc, -1, 0"""))
    fill += lines(f"""s_lshl_b32 {sVS}, {sVS}, 13
    s_and_b32 {sB}, {sB}, 15
    s_mul_i32 {sE}, {sB}, {VT1}
    s_lshl_b32 {sC}, {sC}, 13
    s_add_u32 {sE}, {sE}, {sC}
    s_and_b32 {sB}, {sW}, 1
    s_lshl_b32 {sB}, {sB}, 12
    s_add_u32 {sE}, {sE}, {sB}
    s_add_u32 {sE}, {sE}, {WS_V}
    v_sub_u32 v14, 16, {vC}
    v_lshrrev_b32 v15, 4, v14
    v_and_b32 v14, 15, v14
    v_lshl_add_u32 v14, v15, 9, v14
    v_cndmask_b32 v14, v14, {vC}, vcc
    v_lshlrev_b32 v14, 4, v14
    v_lshl_add_u32 {vVld}, {vQ}, 8, v14
    s_lshr_b32 {sD}, {sB}, 1
    s_add_u32 {sB}, {sB}, {WS_H}
    s_mul_i32 {sHO[0]}, {sTAU[0]}, {28*1024}
    s_add_u32 {sD}, {sD}, {sHO[0]}
    s_add_u32 {sD}, {sD}, {WS_H + 24*1024}
    s_add_u32 {sHO[0]}, {sHO[0]}, {sB}
    s_mul_i32 {sHO[1]}, {sTAU[1]}, {28*1024}
    s_add_u32 {sHO[1]}, {sHO[1]}, {sB}
    v_lshrrev_b32 v14, 2, {vC}
    v_and_b32 v15, 1, {vQ}
    v_lshrrev_b32 v16, 3, {vC}
    v_lshl_add_u32 v16, v15, 1, v16
    v_and_b32 v17, 3, {vC}
    v_lshlrev_b32 v17, 3, v17
    s_and_b32 {sB}, {sW}, 1
    s_lshl_b32 {sB}, {sB}, 13
    v_add_u32 v17, {sB}, v17
    v_lshl_add_u32 v14, {vQ}, 2, v14
    v_lshl_add_u32 v14, v14, 7, v17
    v_lshlrev_b32 {vGa}, 2, {vC}""")
    vWoRd2 = ['v7', 'v11', 'v12', 'v24']
    for dt in range(4):
        fill += lines(f"""v_xor_b32 v15, {dt}, v16
        v_lshl_add_u32 {vWoRd2[dt]}, v15, 5, v14""")
    if o['f_where'] != 2: ffill = []
    else:
        ffill = [l.replace(sA, 's44').replace(sB, 's45').replace(sC, 's46') for l in ffill]
        hd = ffill[:5]
        ffill = [lambda: p('\n'.join(hd))] + ffill[5:]
    def reduction(ps, inline):
        nt = len(PT[ps]); rb_ = RED
        r = []
        for u in range(1, 4):
            for tl in range(nt):
                r.append(f"ds_write_b128 {vRw[u-1]}, {vr(acc(ps,u,tl))} offset:{rb_ + ((u-1)*2+tl)*1024}")
                if not inline: r += ['', '']
        def sync():
            w = [t for t in p.vm if isinstance(t, tuple) and t[0] == 'wo']
            need = ['vst', 'clr'] + (w[:-o['wo_lag']] if (o['wo_lag'] and ps < 3 and Q['w']) else w)
            if ps >= 2 or ps == 0: p.wait_vm(need if ps >= 2 else ['vst', 'clr'], 'lgkmcnt(0)')
            else: p("s_waitcnt lgkmcnt(0)")
            barrier()
            if ps >= 2:
                for pc in range(7):
                    if need.count(('wo', pc)) == 4 or (o['raw'] and pc >= 5): wo_vis.add(pc)
            if ps == 0: flag_store(WS_FV)
        if not inline: r += [''] * 3
        r.append(sync)
        for u in range(1, 4):
            for tl in range(nt):
                r.append((f"ds_read_b128 {vr(acc(ps,u,tl))}, {vRr} offset:{rb_ + ((u-1)*2+tl)*1024}", ('rd', ps, u)))
        if not inline: r += [''] * 4 + [lambda: (p.wait_lg(('rd', ps, 3)), barrier())]
        a0 = acc(ps, 0, 0)
        for u in range(1, 4):
            r.append(lambda u=u: p.wait_lg(('rd', ps, u)))
            if inline:
                for i in range(2 * nt): r.append(f"v_pk_add_f32 {vr(a0+2*i,2)}, {vr(a0+2*i,2)}, {vr(acc(ps,u,0)+2*i,2)}")
            else:
                for i in range(4 * nt): r.append(f"v_add_f32 v{a0+i}, v{a0+i}, v{acc(ps,u,0)+i}")
        for i in range(4 * nt): r.append(f"v_mul_f32 v{a0+i}, v{a0+i}, v{Z1+8*ps+i}")
        for i in range(2 * nt): r.append(f"v_cvt_pk_bf16_f32 v{PKH+i}, v{a0+2*i}, v{a0+2*i+1}")
        for i in range(2 * nt): r.append(f"v_min_u32 v{PKH+i}, -2, v{PKH+i}")
        if nt == 1:
            r += [f"v_mov_b32 v{PKH+2}, v{PKH}", f"v_mov_b32 v{PKH+3}, v{PKH+1}",
                  f"v_permlane32_swap_b32 v{PKH}, v{PKH+2}", f"v_permlane32_swap_b32 v{PKH+1}, v{PKH+3}"]
        r.append(lambda: (h_store(ps, PKH, 'hst'), red_done.add(ps)))
        if inline: r.append(barrier)
        return r
    wo_vis = set(); red_done = set(); npost = [0]
    last_setup = fill[-1]
    if o['clr_at'] == 'p2':
        fill = [f"v_mov_b32 v{PKH+i}, -1" for i in range(4)] + fill
        for i_ in range(4): fill.insert(6 + o['clr_gap'] * i_, lambda i_=i_: h_store(i_, PKH, 'clr'))
    def setup_done(): return last_setup not in fill
    def emit(x):
        if callable(x): x()
        elif isinstance(x, tuple): p(x[0], tag=x[1])
        elif x: p(x)
    ringfree = [zreg(n) for n in range(112 - NR, 112)]
    Vreg = {}
    for dt in range(4):
        for kl in range(4):
            Vreg[(kl, dt)] = ar(64 * dt + 4 * (kl - 2)) if kl >= 2 else vr(ringfree[2 * dt + kl])
    pool = ringfree[8:] + [ACC + 4 * i for i in range(8)] + [Z1 + 4 * i for i in range(7)]
    Hreg = {g: pool[8 * g: 8 * g + 8] for g in range(4)}
    def h_load(g, i, tag):
        sr = sA if tag == 'untracked' else sG1
        if g < 3:
            if i % 4 == 0: p(f"s_add_u32 {sr}, {sHO[1 - i // 4]}, {8192*g}")
            p(f"buffer_load_dwordx4 {vr(Hreg[g][i])}, {vL16}, {sWS}, {sr} offen offset:{1024*(i%4)} sc1", tag=tag)
        else:
            if i % 2 == 0: p(f"s_xor_b32 {sr}, {sD}, {1024*i}")
            p(f"buffer_load_dwordx4 {vr(Hreg[g][i])}, {vL16}, {sWS}, {sr} offen offset:{1024*(i%2)} sc1", tag=tag)
    post = []
    def v_load(kl, dt):
        p(f"s_mul_i32 {sG2}, {sVS}, {dt}\ns_add_u32 {sG2}, {sG2}, {sE}")
        p(f"buffer_load_dwordx4 {Vreg[(kl,dt)]}, {vVld}, {sWS}, {sG2} offen offset:{kl*1024} sc1", tag='vt')
        p(f"buffer_load_dwordx4 {Vreg[(kl+1,dt)]}, {vVld}, {sWS}, {sG2} offen offset:{kl*1024+1024} sc1", tag='vt')
    for dt in range(4): post.append((112 - NR + 2 * dt + 1, None, lambda dt=dt: v_load(0, dt)))
    for dt in range(4): post.append((o['v2_at'] + o['v2_gap'] * dt, None, lambda dt=dt: v_load(2, dt)))
    def g_load():
        for u in range(2):
            p(f"s_lshl_b32 {sG2}, {sTAU[u]}, 6\ns_add_u32 {sG2}, {sG2}, {WS_G}")
            p(f"buffer_load_dword v{BS4+2*u}, {vGa}, {sWS}, {sG2} offen sc1", tag='g')
    post.append((98, None, g_load))
    for g in range(2):
        for i in range(8):
            idx = 8 * g + i
            post.append((112 - NR + 8 + idx if idx < 13 else 0, None if idx < 13 else 2, lambda g=g, i=i: h_load(g, i, ('h', g))))
    def wreg(s_, dt): return 64 * dt + (8 + 4 * s_ if s_ < 14 else 4 * (s_ - 14))
    wadj = [0]
    def wo_read(s_, dt, h):
        sl = s_ if s_ < 14 else s_ - 2
        off = WOB[sl >> 1] + (sl & 1) * 4096 + h * 2048
        want = 0 if WOB[sl >> 1] < RING else RING + ((WOB[sl >> 1] - RING) // (3 * SL)) * 3 * SL
        if want != wadj[0]:
            d = want - wadj[0]
            for r_ in vWoRd2: p(f"v_add_u32 {r_}, {d}, {r_}" if d > 0 else f"v_subrev_u32 {r_}, {-d}, {r_}")
            wadj[0] = want
        if s_ == 14 and dt == 0 and h == 0:
            for r_ in vWoRd2: p(f"v_xor_b32 {r_}, 8192, {r_}")
        p(f"ds_read_b64_tr_b16 {ar(wreg(s_,dt)+2*h,2)}, {vWoRd2[dt]} offset:{off - want}", tag=('wf', s_))
    wrd = [(s_, dt, h) for s_ in range(16) for dt in range(4) for h in range(2)]

    if o['f_pre']:
        for x in fill + ffill: emit(x)
        fill = []; ffill = []
    for n, (ps, k, tl) in enumerate(U):
        if k == 0 and tl == 0 and ps:
            fill = reduction(ps - 1, False) + fill
            if o.get('fine2'): stamp(f'pass{ps-1}')
        if n == o['fv_at']: flag_issue(WS_FV, 16, 'fv')
        if n == 112 - NR - 1: flag_check(WS_FV, 16, 'fv')
        if n % 2 == 0: p.wait_vm([('z', min(n + 1, 111))])
        if n == 0: stamp('z_first')
        for j, u in enumerate((1, 2, 3, 0)):
            a_ = acc(ps, u, tl)
            c_ = vr(a_) if k else (vr(BS4) if u == 0 else '0')
            p(f"v_mfma_f32_16x16x32_bf16 {vr(a_)}, {vr(zreg(n))}, {ar(64*u+4*k)}, {c_}")
            if j < 3:
                x = fill.pop(0) if fill else ''
                if x == '' and ffill and setup_done(): x = ffill.pop(0)
                emit(x)
                if isinstance(x, str) and x.startswith('s_') and fill: emit(fill.pop(0))
                if ps == 3 and fill: emit(fill.pop(0))
                if ps == 3 and not fill:
                    for _ in range(2):
                        if wrd[0][0] + 2 < k and (wrd[0][0] >> 1) in wo_vis: wo_read(*wrd.pop(0))
            if j == 1 and len(Q['w']) > 4 * o['wo_defer'] and legal(Q['w'][0][0]) and n % o['wo_every'] == 0: issue('w')
        if n + NR < 112: z_load(n + NR)
        else:
            while len(Q['w']) > 4 * o['wo_defer']: issue('w')
            if post and npost[0] < o['post_n'] and post[0][0] <= n and (post[0][1] is None or post[0][1] in red_done): post.pop(0)[2](); npost[0] += 1
    if o.get('verbose'): print('leftover', len(fill), len(ffill), 'wrd', len(wrd))
    for x in fill + ffill: emit(x)
    stamp('p2_mfma')
    r3 = reduction(3, True)
    for i, x in enumerate(r3):
        if i == len(r3) - 2:
            while len(post) > o['pre_keep'] and o['pre_store']: post.pop(0)[2]()
        emit(x)
        if len(post) > o['pre_keep'] and o['pre_store'] and i % 2 == 1: post.pop(0)[2]()
    stamp('h_pub')
    A3 = ACC + 32
    bg3 = [x[2] for x in post] + [lambda: issue('w')] * len(Q['w'])
    tpub = [0]
    def fg3(ins, nread=2):
        for i, l in enumerate(ins):
            emit(l)
            for _ in range(nread):
                if wrd and (wrd[0][0] < 14 or ydone) and min(wrd[0][0] >> 1, 6) in wo_vis: wo_read(*wrd.pop(0))
            tpub[0] += 1
            if tpub[0] == o['h2_at']: bg3.extend([lambda i=i_: h_load(2, i, ('h', 2)) for i_ in range(8)])
            if tpub[0] == o['h3_at']: bg3.extend([lambda i=i_: h_load(3, i, ('h', 3)) for i_ in range(4)])
            if bg3 and i % o['bg3e'] == o['bg3e'] - 1: bg3.pop(0)()
    def need_h(g):
        if not any(t == ('h', g) for t in p.vm) and g >= 2 and tpub[0] < o[f'h{g}_at']:
            bg3.extend([lambda i=i_: h_load(g, i, ('h', g)) for i_ in range(len(Hreg[g]))]); o[f'h{g}_at'] = -1
        while sum(t == ('h', g) for t in p.vm) < len(Hreg[g]): bg3.pop(0)()
        p.wait_vm([('h', g)])
    def check_ops(g):
        rs = [r_ + i for r_ in Hreg[g] for i in range(4) if i % (4 // o['chk']) == 0]
        ops = [f"v_max3_u32 v23, v{rs[0]}, v{rs[1]}, v{rs[2]}"]
        rs = rs[3:]
        while len(rs) >= 2:
            ops.append(f"v_max3_u32 v23, v23, v{rs[0]}, v{rs[1]}"); rs = rs[2:]
        if rs: ops.append(f"v_max_u32 v23, v23, v{rs[0]}")
        ops.append(f"v_cmp_eq_u32 vcc, -1, v23")
        return ops
    def check_branch(g):
        p(f"""s_cbranch_vccz L_ok{g}
        s_call_b64 {sRET}, L_retry{g}
        L_ok{g}:""")
    ydone = []
    while sum(t == 'vt' for t in p.vm) < 16 or 'g' not in p.vm: bg3.pop(0)()
    p(f"""s_xor_b32 {sA}, {sW}, 1
    s_lshl_b32 {sA}, {sA}, 12
    v_add_u32 v14, {sA}, {vL16}
    v_add_u32 v16, {sW4K}, {vL16}
    s_lshl_b32 {sF}, {sTAU[0]}, 10
    s_lshl_b32 {sB}, {sCB}, 7
    s_add_u32 {sF}, {sF}, {sB}
    s_mov_b32 {sCNT}, 0""")
    p.wait_vm(['vt', 'g'])
    ym = []
    for kl in range(4):
        for u in range(2):
            for dt in range(4):
                a_ = A3 + 16 * u + 4 * dt
                ym.append(f"v_mfma_f32_16x16x32_bf16 {vr(a_)}, {Vreg[(kl,dt)]}, {vr(FF+16*u+4*kl)}, {vr(a_) if kl else '0'}")
    fg3(ym, o['ynr'])
    ydone.append(1)
    need_h(0)
    sc = check_ops(0) + [f"v_pk_mul_f32 {vr(A3+16*u+2*i,2)}, {vr(A3+16*u+2*i,2)}, {vr(BS4+2*u,2)} op_sel_hi:[1,0]" for u in range(2) for i in range(8)]
    fg3(sc, o['snr'])
    check_branch(0)
    stamp('y_done')
    for g in range(4):
        ms = []
        if g < 3:
            for i in range(8):
                u = 1 - i // 4; s_ = 4 * g + i % 4
                for dt in range(4):
                    a_ = A3 + 16 * u + 4 * dt
                    ms.append((s_, f"v_mfma_f32_16x16x32_bf16 {vr(a_)}, {ar(wreg(s_,dt))}, {vr(Hreg[g][i])}, {vr(a_)}"))
        else:
            for i in range(4):
                for dt in range(4):
                    a_ = A3 + 4 * dt
                    ms.append((12 + i, f"v_mfma_f32_16x16x32_bf16 {vr(a_)}, {ar(wreg(12+i,dt))}, {vr(Hreg[g][i])}, {vr(a_)}"))
        chk = check_ops(g + 1) if g < 3 else []
        seq = []
        oset = lines(f"""s_mul_i32 {sB}, {sW}, 2304
        s_add_u32 {sB}, {sB}, {RED + 16384}
        v_mul_u32_u24 v26, 144, {vC}
        v_lshl_add_u32 v26, {vQ}, 3, v26
        v_add_u32 v26, {sB}, v26
        v_lshrrev_b32 v15, 3, v0
        v_and_b32 v17, 7, v0
        v_mul_u32_u24 v27, 144, v15
        v_lshl_add_u32 v27, v17, 4, v27
        v_add_u32 v27, {sB}, v27
        v_lshlrev_b32 v15, 17, v15
        v_lshl_add_u32 v15, v17, 4, v15""") if g == 2 else []
        for i, (s_, m) in enumerate(ms):
            def mm(s_=s_, m=m):
                while wrd and wrd[0][0] <= s_:
                    assert min(wrd[0][0] >> 1, 6) in wo_vis
                    wo_read(*wrd.pop(0))
                p.wait_lg(('wf', s_))
                p(m)
            seq.append(mm)
            if oset: seq.append(oset.pop(0))
            if chk and i == len(ms) - len(chk) - 1: seq.append(lambda g=g: need_h(g + 1))
            if chk and i >= len(ms) - len(chk) and len(chk) >= len(ms) - i: seq.append(chk.pop(0))
            if g == 2 and 18 <= i < 22: seq.append(f"ds_write_b128 v14, {vr(A3+16+4*(i-18))} offset:{RED + (i-18)*1024}")
            if g == 3 and i == 3:
                def xch():
                    while wrd: wo_read(*wrd.pop(0))
                    p("s_waitcnt lgkmcnt(0)\ns_barrier")
                    for dt in range(4): p(f"ds_read_b128 {vr(A3+16+4*dt)}, v16 offset:{RED + dt*1024}", tag='xch')
                seq.append(xch)
        seq += chk
        fg3(seq, 1)
        if g < 3: check_branch(g + 1)
        if g == o['wo_bar'] and len(wo_vis) < 7:
            while Q['w']: bg3.pop(0)()
            p.wait_vm([('wo', 6)]); barrier(); wo_vis.update(range(7))
        if g == 2: stamp('g2_done')
    p.wait_lg('xch')
    for dt in range(4):
        for h in range(2): p(f"v_pk_add_f32 {vr(A3+4*dt+2*h,2)}, {vr(A3+4*dt+2*h,2)}, {vr(A3+16+4*dt+2*h,2)}")
        p(f"v_cvt_pk_bf16_f32 v{18+2*dt}, v{A3+4*dt}, v{A3+4*dt+1}")
        p(f"v_cvt_pk_bf16_f32 v{19+2*dt}, v{A3+4*dt+2}, v{A3+4*dt+3}")
        p(f"ds_write_b64 v26, {vr(18+2*dt,2)} offset:{32*dt}")
    p("s_waitcnt lgkmcnt(0)")
    p(f"ds_read_b128 {vr(A3)}, v27\nds_read_b128 {vr(A3+4)}, v27 offset:{8*144}")
    p(f"s_add_u32 {sA}, {sF}, {8 << 17}\ns_waitcnt lgkmcnt(1)")
    p(f"buffer_store_dwordx4 {vr(A3)}, v15, {sOUT}, {sF} offen {o['outfl']}")
    p("s_waitcnt lgkmcnt(0)")
    p(f"buffer_store_dwordx4 {vr(A3+4)}, v15, {sOUT}, {sA} offen {o['outfl']}")
    if stamps:
        stamp('end')
        p(f"""v_writelane_b32 v30, {sCNT}, 31
        s_lshl_b32 {sA}, s2, 2
        s_add_u32 {sA}, {sA}, {sW}
        s_lshl_b32 {sA}, {sA}, 8
        s_add_u32 {sA}, {sA}, {WS_STAMP}
        v_lshlrev_b32 v14, 3, v0
        s_mov_b64 exec, {sLO32}""")
        p(f"buffer_store_dwordx2 v[30:31], v14, {sWS}, {sA} offen")
    if o.get('enc'):
        if o['enc'] == 'end': p("s_memrealtime s[98:99]\ns_waitcnt lgkmcnt(0)")
        if o['enc'] == 'drain': p("s_waitcnt vmcnt(0)\ns_memrealtime s[98:99]\ns_waitcnt lgkmcnt(0)")
        if o['enc'] == 'none': p(f"s_mov_b32 s98, {sT0}")
        p("""L_padspin:
        s_memrealtime s[100:101]
        s_waitcnt lgkmcnt(0)
        s_sub_u32 s100, s100, s98
        s_cmp_lt_i32 s100, 5000
        s_cbranch_scc1 L_padspin""")
    p("L_end:\ns_endpgm")
    for b in range(4):
        p(f"L_retry{b}:")
        for i in range(len(Hreg[b])): h_load(b, i, 'untracked')
        p("s_waitcnt vmcnt(0)")
        for l in check_ops(b): p(l)
        p(f"""s_add_u32 {sCNT}, {sCNT}, 1
        s_cmp_ge_u32 {sCNT}, {SPIN_LIMIT}
        s_cbranch_scc1 L_retry{b}_r
        s_cbranch_vccnz L_retry{b}
        L_retry{b}_r:
        s_setpc_b64 {sRET}""")
    p.raw(f""".section .rodata,"a"
.p2align 6
.amdhsa_kernel {NAME}
  .amdhsa_next_free_vgpr 512
  .amdhsa_next_free_sgpr 102
  .amdhsa_accum_offset 256
  .amdhsa_group_segment_fixed_size 0
  .amdhsa_kernarg_size 112
  .amdhsa_user_sgpr_count 2
  .amdhsa_user_sgpr_kernarg_segment_ptr 1
  .amdhsa_system_sgpr_workgroup_id_x 1
.end_amdhsa_kernel""")
    assert not bgq
    return p.text()

def code_size(txt):
    import subprocess, re
    open('_sz.s', 'w').write(txt)
    subprocess.run(['clang', '-x', 'assembler', '-target', 'amdgcn-amd-amdhsa', '-mcpu=gfx950', '-c', '_sz.s', '-o', '_sz.o'], check=True)
    out = subprocess.run(['llvm-objdump', '-h', '_sz.o'], capture_output=True, text=True).stdout
    return int(re.search(r'\.text\s+([0-9a-f]+)', out).group(1), 16)

def write(fn, stamps=False, opt=None):
    opt = dict(opt or {})
    opt['code_size'] = code_size(gen(stamps, opt)) & ~3
    import subprocess, re
    sym = subprocess.run(['llvm-objdump', '-t', '_sz.o'], capture_output=True, text=True).stdout
    opt['pf2_off'] = {m.group(2): int(m.group(1), 16) for m in re.finditer(r'^([0-9a-f]+) .* (Lpf2\w+)$', sym, re.M)}
    txt = gen(stamps, opt)
    assert code_size(txt) >= opt['code_size']
    open(fn, 'w').write(txt)
    if stamps: open(fn + '.names', 'w').write('\n'.join(STAMPN))

if __name__ == '__main__':
    stamps = '--stamps' in sys.argv
    out = [a for a in sys.argv[1:] if not a.startswith('--')]
    write(out[0], stamps)
```
